```python
import torch

def _softmax(x, axis=-1):
    return torch.softmax(x, dim=axis)
def _gelu(x):
    return torch.nn.functional.gelu(x, approximate="tanh")
def _silu(x):
    return torch.nn.functional.silu(x)
def _sigmoid(x):
    return torch.sigmoid(x)
def _layernorm(x, axis=-1, eps=1e-5):
    m = x.mean(dim=axis, keepdim=True)
    v = x.var(dim=axis, keepdim=True, unbiased=False)
    return (x - m) / torch.sqrt(v + eps)
def _scatter_add(tgt, idx, src, axis=0):
    return tgt.clone().index_add_(axis, idx, src)
def _segment_sum(src, seg, n):
    out = torch.zeros((n,) + src.shape[1:], dtype=src.dtype)
    return out.index_add_(0, seg, src)
def _pad(x, pw):
    flat = tuple(v for pair in reversed(pw) for v in pair)
    return torch.nn.functional.pad(x, flat)

kernel_name = 'parallel_sum__sliding_block_cached__glu_gated_geglu__decode'

def setup_inputs():

    _w = (lambda a: (lambda t: t.to(torch.bfloat16) if t.is_floating_point() else t)(torch.as_tensor(a)))
    def _A_setup():
        B, Sq, D = 4, 1, 512
        Hq, Hkv, Sk, Dh = 32, 8, 4096, 128
        assert Hq % Hkv == 0, (Hq, Hkv)
        return {
            "x": _w((lambda *s: torch.randn(*s, dtype=torch.bfloat16) * 0.05)(B, Sq, D)),
            "k_cache": _w((lambda *s: torch.randn(*s, dtype=torch.bfloat16) * 1.6)(B, Hkv, Sk, Dh)),
            "v_cache": _w((lambda *s: torch.randn(*s, dtype=torch.bfloat16) * 0.8)(B, Hkv, Sk, Dh)),
            "wq": _w((lambda *s: torch.randn(*s, dtype=torch.bfloat16) * 1.6)(D, Hq * Dh) * (D ** -0.5)),
            "wo": _w((lambda *s: torch.randn(*s, dtype=torch.bfloat16) * 0.8)(Hq * Dh, D) * ((Hq * Dh) ** -0.5)),
        }
    _A_in = _A_setup()

    def _B_setup():
        B, S, Dm, Df = 4, 1, 512, 1792
        return {
            "x": _w((lambda *s: torch.randn(*s, dtype=torch.bfloat16) * 0.05)(B, S, Dm)),
            "w_gate": _w((lambda *s: torch.randn(*s, dtype=torch.bfloat16) * 0.8)(Dm, Df) * (Dm ** -0.5)),
            "w_up": _w((lambda *s: torch.randn(*s, dtype=torch.bfloat16) * 0.8)(Dm, Df) * (Dm ** -0.5)),
            "w_down": _w((lambda *s: torch.randn(*s, dtype=torch.bfloat16) * 0.8)(Df, Dm) * (Df ** -0.5)),
        }
    _B_in = _B_setup()

    return {
        "A_x": _A_in["x"],
        "A_k_cache": _A_in["k_cache"],
        "A_v_cache": _A_in["v_cache"],
        "A_wq": _A_in["wq"],
        "A_wo": _A_in["wo"],
        "B_x": _B_in["x"],
        "B_w_gate": _B_in["w_gate"],
        "B_w_up": _B_in["w_up"],
        "B_w_down": _B_in["w_down"],
    }

def reference(A_x, A_k_cache, A_v_cache, A_wq, A_wo, B_x, B_w_gate, B_w_up, B_w_down):
    def _A_ref(x, k_cache, v_cache, wq, wo):
        B, Sq, D = x.shape
        Hq, Dh = 32, 128
        Hkv, Sk = k_cache.shape[1], k_cache.shape[2]
        W = min(4096, max(256, Sk // 4))
        rep = Hq // Hkv
        q = (lambda x, *d: x.permute(*d))((x @ wq).reshape(B, Sq, Hq, Dh), 0, 2, 1, 3)
        k = (lambda x, n, axis: torch.repeat_interleave(x, n, dim=axis))(k_cache[:, :, Sk - W:, :], rep, axis=1)
        v = (lambda x, n, axis: torch.repeat_interleave(x, n, dim=axis))(v_cache[:, :, Sk - W:, :], rep, axis=1)
        scores = torch.einsum("bhqd,bhkd->bhqk", q, k) * (Dh ** -0.5)
        p = _softmax(scores, axis=-1)
        o = torch.einsum("bhqk,bhkd->bhqd", p, v)
        return (lambda x, *d: x.permute(*d))(o, 0, 2, 1, 3).reshape(B, Sq, Hq * Dh) @ wo

    def _B_ref(x, w_gate, w_up, w_down):
        g = torch.einsum("bsd,df->bsf", x, w_gate)
        u = torch.einsum("bsd,df->bsf", x, w_up)
        h = _gelu(g) * u
        return torch.einsum("bsf,fd->bsd", h, w_down)

    x = A_x
    xn = _layernorm(x, axis=-1)
    return x + _A_ref(xn, A_k_cache, A_v_cache, A_wq, A_wo) + _B_ref(xn, B_w_gate, B_w_up, B_w_down)
```

```python
import re,sys
TRANS=("v_exp_f32","v_log_f32","v_rcp_f32","v_rsq_f32","v_sqrt_f32","v_sin_f32","v_cos_f32","v_rcp_iflag_f32")
def regs(op):
    op=op.strip()
    neg=op.lstrip("-")
    if neg.startswith("abs(") or neg.startswith("|"): neg=neg.replace("abs(","").replace(")","").replace("|","")
    m=re.fullmatch(r"([vsa])(\d+)",neg)
    if m: return {(m.group(1),int(m.group(2)))}
    m=re.fullmatch(r"([vsa])\[(\d+):(\d+)\]",neg)
    if m: return {(m.group(1),k) for k in range(int(m.group(2)),int(m.group(3))+1)}
    if neg=="vcc": return {("s","vcc_lo"),("s","vcc_hi")}
    if neg in("vcc_lo","vcc_hi"): return {("s",neg)}
    if neg=="exec": return {("s","exec_lo"),("s","exec_hi")}
    if neg in("exec_lo","exec_hi"): return {("s",neg)}
    if neg=="m0": return {("s","m0")}
    return set()
class I:
    def __init__(s,text,ln):
        s.text=text; s.ln=ln
        t=text.split(None,1); s.op=t[0]; rest=t[1] if len(t)>1 else ""
        parts=[];d=0;cur=""
        for ch in rest:
            if ch=="[":d+=1
            if ch=="]":d-=1
            if ch=="," and d==0: parts.append(cur);cur=""
            else: cur+=ch
        if cur.strip(): parts.append(cur)
        ops=[]
        s.mods=""
        for k,p in enumerate(parts):
            p=p.strip()
            if k==len(parts)-1:
                q=p.split(None,1)
                if len(q)>1: s.mods=q[1]
                p=q[0] if q else p
            ops.append(p)
        s.ops=ops
        op=s.op
        s.valu=op.startswith("v_")
        s.mfma=op.startswith("v_mfma")
        s.dpp=("_dpp" in op) or ("row_" in s.mods) or ("quad_perm" in s.mods)
        s.perml=op.startswith("v_permlane")
        s.trans=any(op.startswith(x) for x in TRANS)
        s.vmem=op.startswith("buffer_") or op.startswith("global_") or op.startswith("flat_")
        s.ds=op.startswith("ds_")
        s.salu=op.startswith("s_")
        s.w=set(); s.r=set()
        R=[regs(o) for o in ops]
        if s.valu:
            if op.startswith("v_cmpx"):
                s.w=R[0]|regs("exec"); s.r=set().union(*R[1:])
            elif op.startswith("v_cmp"):
                s.w=R[0]; s.r=set().union(*R[1:])
            elif s.perml:
                s.w=R[0]|R[1]; s.r=R[0]|R[1]
            elif op.startswith(("v_add_co","v_sub_co","v_addc_co","v_subb_co","v_subrev_co")):
                s.w=R[0]|R[1]; s.r=set().union(*R[2:])
            elif op.startswith(("v_fmac","v_dot2c","v_pk_fmac")):
                s.w=R[0]; s.r=set().union(*R)
            elif op.startswith("v_nop"):
                pass
            else:
                s.w=R[0]; s.r=set().union(*R[1:]) if len(R)>1 else set()
                if op.startswith("v_cndmask") and len(ops)==3: s.r|=regs("vcc")
            if s.dpp and not op.startswith("v_fmac"): pass
            if s.mfma:
                s.D=R[0]; s.A=R[1]; s.B=R[2]; s.C=R[3]
                s.passes=8 if "32x32" in op else 4
        elif s.vmem:
            st="store" in op or ("atomic" in op)
            lds=" lds" in (" "+s.mods)
            if op.startswith("buffer_"):
                if lds: s.r=set().union(*R)
                elif st: s.r=set().union(*R)
                else: s.w=R[0]; s.r=set().union(*R[1:])
            else:
                if st: s.r=set().union(*R)
                else: s.w=R[0]; s.r=set().union(*R[1:])
            s.store=st
            s.wide=st and ("x4" in op or "x3" in op)
            if s.wide:
                s.data = R[0] if op.startswith("buffer_") else R[1]
        elif s.ds:
            if op.startswith(("ds_read","ds_bpermute","ds_permute","ds_swizzle")): s.w=R[0]; s.r=set().union(*R[1:]) if len(R)>1 else set()
            else: s.r=set().union(*R)
        elif s.salu:
            if op.startswith(("s_cmp","s_cbranch","s_branch","s_waitcnt","s_nop","s_barrier","s_endpgm","s_setprio","s_sleep")):
                s.r=set().union(*R) if R else set()
            else:
                s.w=R[0] if R else set(); s.r=set().union(*R[1:]) if len(R)>1 else set()
                if "saveexec" in op: s.w|=regs("exec")
        s.states = 1
        if op=="s_nop": s.states=int(ops[0],0)+1
def lint(text):
    ins=[];labels={}
    for ln,l in enumerate(text.split("\n"),1):
        l=l.split(";")[0].strip()
        if not l or l.startswith("."): continue
        if l.endswith(":"): labels[l[:-1]]=len(ins); continue
        if re.match(r"^(s_|v_|ds_|buffer_|global_|flat_)",l): ins.append(I(l,ln))
    probs=[]
    def check(seq):
        for a in range(len(seq)):
            p=ins[seq[a]]
            if not (p.w or p.mfma or getattr(p,"wide",False)): continue
            dist=0
            for b in range(a+1,min(len(seq),a+24)):
                c=ins[seq[b]]
                def need(n,why):
                    if dist<n: probs.append((p.ln,c.ln,why,n,dist,p.text,c.text))
                vw={x for x in p.w if x[0] in"va"}; sw={x for x in p.w if x[0]=="s"}
                if p.valu and not p.mfma:
                    if c.dpp and (vw & c.r): need(2,"VALU->DPP")
                    if c.perml and (vw & c.r): need(2,"VALU->permlane")
                    if c.mfma and (vw & c.r): need(2,"VALU->MFMA")
                    if c.op.startswith(("v_readlane","v_readfirstlane")) and (vw & c.r): need(1,"VALU->readlane")
                    if p.trans and c.valu and not c.trans and (vw & c.r): need(1,"trans->VALU")
                    if p.trans and (c.vmem or c.ds) and (vw & c.r): need(1,"trans->mem(cons)")
                    if sw:
                        ex={("s","exec_lo"),("s","exec_hi")}
                        sw2=sw-ex
                        if c.valu and (sw2 & c.r): need(2,"VALU sgpr->VALU read")
                        if c.vmem and (sw2 & c.r): need(5,"VALU sgpr->VMEM")
                        if (sw&ex):
                            if c.dpp: need(5,"VALU exec->DPP")
                            if c.mfma: need(4,"VALU exec->MFMA")
                            if c.perml or c.op.startswith(("v_readlane","v_readfirstlane","v_writelane")): need(4,"cmpx->permlane/readlane")
                if p.mfma:
                    n=12 if p.passes==8 else 8
                    if c.mfma:
                        if p.D & (c.A|c.B): need(n,"MFMA D->MFMA A/B")
                        if (p.D & c.C) and p.D!=c.C: need(10 if p.passes==8 else 6,"MFMA D->partial C")
                    elif c.valu and (p.D & (c.r|c.w)): need(n,"MFMA D->VALU")
                    elif (c.vmem or c.ds) and (p.D & (c.r|c.w)): need(n,"MFMA D->mem")
                    if c.valu and not c.mfma and (p.C & c.w): need(7 if p.passes==8 else 3,"MFMA C WAR")
                if getattr(p,"wide",False):
                    if c.valu and (p.data & c.w): need(2,"wide store WAR valu")
                    elif (p.data & c.w): need(1,"wide store WAR")
                if p.salu and ("s","m0") in p.w and (c.vmem and " lds" in " "+c.mods): need(1,"m0->ldsdma")
                dist+=c.states
                if c.op in("s_branch","s_endpgm","s_setpc_b64"): break
    check(list(range(len(ins))))
    for k,i in enumerate(ins):
        if i.op.startswith(("s_cbranch","s_branch")):
            t=labels.get(i.ops[0])
            if t is None: continue
            pre=[]
            j=k
            while j>=0 and len(pre)<24:
                if j<k and ins[j].op in("s_branch","s_endpgm"): break
                pre.append(j); j-=1
            pre.reverse()
            post=list(range(t,min(len(ins),t+24)))
            seq=pre+post
            save=i.op; i.op="s_nopx"
            check(seq); i.op=save
    seen=set(); out=[]
    for p in probs:
        key=(p[0],p[1],p[2])
        if key in seen: continue
        seen.add(key); out.append(p)
    return out
if __name__=="__main__":
    for p in lint(open(sys.argv[1]).read()): print(p)
```

```python
import sys, struct, json
from asmlib import *
import lint

NAME="parallel_sum__sliding_block_cached__glu_gated_geglu__decode"
KN=NAME+"_kernel"
def f2u(x): return struct.unpack("<I",struct.pack("<f",x))[0]
def hx(x): return "0x%08x"%(x & 0xffffffff)

QOFF=0x1000; HOFF=0x12000; ZOFF=0x1A000; OOFF=0x20000; DOFF=0x100000; STOFF=0x400000
PA=0; QL=8448; OL=12544; ML=20992; HL=21248; PC=22272; CNT=29184; LDSZ=29696
PCS=2304
HEADER=open("cdna_kernels/%s.s.ref"%NAME).read().split("; Override launch")[0]

def gen(opt):
    a=A()
    stamps=opt.get("stamps",False)
    NT=opt.get("nt","nt")
    NTW=opt.get("ntw",NT)
    STF=opt.get("stf","sc1"); LDF=opt.get("ldf","sc1")
    SPIN=opt.get("spin",1<<16)
    a(HEADER.rstrip())
    a(f"; @launch grid=(256,1,1) block=(512,1,1) lds={LDSZ}")
    a('.amdgcn_target "amdgcn-amd-amdhsa--gfx950"')
    a(".text")
    a(head(KN))
    sX,sI,sW,sTAG,sEP="s29","s30","s31","s32","s33"
    nst=[0]
    def stamp(k):
        if stamps: a(f"s_memrealtime s[{70+2*k}:{71+2*k}]")
    def dump_stamps(n):
        if not stamps: return
        a("s_waitcnt lgkmcnt(0)")
        a("s_lshl_b32 s34, s2, 3"); a("s_add_u32 s34, s34, s28"); a("s_lshl_b32 s34, s34, 6"); a(f"s_add_u32 s34, s34, {STOFF}")
        a("s_mov_b64 exec, 1")
        a("v_mov_b32 v2, s34")
        for k in range(n):
            a(f"v_mov_b32 v3, s{70+2*k}"); a(f"buffer_store_dword v3, v2, s[36:39], 0 offen offset:{4*k}"); a("s_nop 0")
        a("s_getreg_b32 s35, hwreg(HW_REG_XCC_ID)"); a("v_mov_b32 v3, s35"); a(f"buffer_store_dword v3, v2, s[36:39], 0 offen offset:60")
    def srd(d,p,size):
        a(f"s_mov_b32 s{d}, s{p}"); a(f"s_and_b32 s{d+1}, s{p+1}, 0xffff"); a(f"s_mov_b32 s{d+2}, {size}"); a(f"s_mov_b32 s{d+3}, 0x20000")
    def spin_check(code):
        a("s_sub_u32 s60, s60, 1"); a(f"s_cbranch_scc1 L_fail{code}")
    fails=set()
    def tagcalc():
        a(f"s_mul_i32 {sTAG}, {sEP}, 0x9E3779B1"); a(f"s_add_u32 {sTAG}, {sTAG}, 0x7F4A7C15")
    C_SCALE=hx(f2u(128**-0.5*1.4426950408889634))
    a("s_cmp_ge_u32 s2, 256"); a("s_cbranch_scc1 L_end")
    if stamps:
        for k in range(1,13): a(f"s_mov_b32 s{70+2*k}, 0")
    stamp(0)
    a("s_load_dwordx16 s[4:19], s[0:1], 0")
    a("s_load_dwordx8 s[20:27], s[0:1], 64")
    a("v_lshrrev_b32 v2, 6, v0")
    a("v_and_b32 v1, 63, v0")
    a(f"s_and_b32 {sX}, s2, 7"); a(f"s_lshr_b32 {sI}, s2, 3")
    a("v_readfirstlane_b32 s28, v2")
    a(f"s_mov_b32 s60, {SPIN}")
    a("s_mov_b32 s52, 4096")
    a("s_mov_b32 s53, 0x05040100"); a("s_mov_b32 s54, 0x07060302")
    a(f"s_and_b32 {sW}, s28, 3")
    a("s_cmp_ge_u32 s28, 4"); a("s_cbranch_scc1 L_roleA")
    a("; ---------------- role B")
    a("v_lshrrev_b32 v2, 4, v1")
    a("v_and_b32 v3, 15, v1")
    a(f"s_lshr_b32 s34, {sI}, 3")
    a(f"s_and_b32 s56, {sI}, 7")
    a(f"s_lshl_b32 s35, s34, 3"); a(f"s_add_u32 s35, s35, {sX}"); a("s_lshl_b32 s35, s35, 20")
    a("s_lshl_b32 s57, s56, 15"); a("s_add_u32 s35, s35, s57"); a(f"s_lshl_b32 s57, {sW}, 13"); a("s_add_u32 s35, s35, s57")
    a(f"s_add_u32 s35, s35, {3072*256}")
    a("v_lshlrev_b32 v4, 8, v3"); a("v_lshl_add_u32 v4, v2, 4, v4"); a("v_add_u32 v4, s35, v4")
    a("v_lshlrev_b32 v5, 4, v3"); a("v_lshl_add_u32 v5, v2, 10, v5"); a("v_add_u32 v5, s35, v5")
    a("s_waitcnt lgkmcnt(0)")
    a(f"s_load_dword {sEP}, s[26:27], 0")
    srd(40,6,33554432); srd(44,8,33554432); srd(36,26,1<<28)
    stamp(1)
    a("s_barrier")
    KR=16; VR=48; QR=80; S0=96; S1=100; PB=104; DR=128; DL=160; ONE=120; PO=116
    for tt in range(2):
        for t in range(4):
            r=KR+(tt*4+t)*4
            a(f"buffer_load_dwordx4 v[{r}:{r+3}], v4, s[40:43], {'s52' if tt else '0'} offen offset:{t*64} {NT}")
    for j in range(8):
        r=VR+j*4
        a(f"buffer_load_dwordx4 v[{r}:{r+3}], v5, s[44:47], {'s52' if j>=4 else '0'} offen offset:{(j&3)*256} {NT}")
    stamp(2)
    a("v_and_b32 v6, 3, v1")
    a(f"v_lshlrev_b32 v7, 4, v1"); a(f"v_add_u32 v7, {QL}, v7")
    a(f"s_mul_i32 s57, {sW}, 2112"); a(f"s_add_u32 s57, s57, {OL}")
    a("v_mul_u32_u24 v8, 528, v6"); a("v_lshl_add_u32 v8, v2, 7, v8"); a("v_add_u32 v8, s57, v8")
    a(f"s_lshl_b32 s57, {sW}, 5"); a(f"s_add_u32 s57, s57, {ML}")
    a("v_lshlrev_b32 v9, 3, v6"); a("v_add_u32 v9, s57, v9")
    a(f"s_mul_i32 s57, {sW}, 528"); a(f"s_add_u32 s57, s57, {OL}")
    a("v_lshlrev_b32 v10, 3, v1"); a("v_add_u32 v11, s57, v10")
    a(f"s_lshl_b32 s57, {sW}, 3"); a(f"s_add_u32 s57, s57, {ML}"); a("v_mov_b32 v12, s57")
    a(f"s_lshl_b32 s57, {sX}, 2"); a(f"s_add_u32 s57, s57, {sW}"); a("s_lshl_b32 s57, s57, 2"); a("s_add_u32 s57, s57, s34")
    a("s_lshl_b32 s57, s57, 3"); a("s_add_u32 s57, s57, s56")
    a("s_lshl_b32 s58, s57, 9"); a(f"s_add_u32 s58, s58, {OOFF}"); a("v_add_u32 v13, s58, v10")
    a("s_lshl_b32 s58, s57, 3"); a(f"s_add_u32 s58, s58, {ZOFF}"); a("v_mov_b32 v14, s58")
    for k in range(4): a(f"v_mov_b32 v{ONE+k}, 0x3f803f80")
    a(f"s_mov_b32 s55, {C_SCALE}")
    a("s_barrier")
    stamp(3)
    for t in range(4): a(f"ds_read_b128 v[{QR+4*t}:{QR+4*t+3}], v7 offset:{t*1024}")
    a("s_waitcnt lgkmcnt(0)")
    tagcalc()
    a("s_waitcnt vmcnt(8)")
    stamp(4)
    for t in range(4):
        for tt in range(2):
            S=S0 if tt==0 else S1; r=KR+(tt*4+t)*4
            c = "0" if t==0 else f"v[{S}:{S+3}]"
            a(f"v_mfma_f32_16x16x32_bf16 v[{S}:{S+3}], v[{r}:{r+3}], v[{QR+4*t}:{QR+4*t+3}], {c}")
    a("s_nop 7")
    a(f"v_max3_f32 v16, v{S0}, v{S0+1}, v{S0+2}")
    a(f"v_max3_f32 v17, v{S0+3}, v{S1}, v{S1+1}")
    a(f"v_max3_f32 v16, v16, v{S1+2}, v{S1+3}")
    a("v_max_f32 v16, v16, v17")
    a("v_mov_b32 v17, v16"); a("s_nop 1"); a("v_permlane16_swap_b32 v16, v17"); a("v_max_f32 v16, v16, v17")
    a("v_mov_b32 v17, v16"); a("s_nop 1"); a("v_permlane32_swap_b32 v16, v17"); a("v_max_f32 v16, v16, v17")
    a("v_mul_f32 v18, s55, v16")
    for k in range(8): a(f"v_fma_f32 v{20+k}, v{S0+k}, s55, -v18")
    for k in range(8): a(f"v_exp_f32 v{20+k}, v{20+k}")
    a("s_nop 0")
    for k in range(4): a(f"v_cvt_pk_bf16_f32 v{PO+k}, v{20+2*k}, v{21+2*k}")
    a("s_waitcnt vmcnt(0)")
    stamp(5)
    bufs=[PB,PB+4,PB+8]
    def perms(i,buf,src):
        sel="s53" if (i&1)==0 else "s54"
        for jj in range(4):
            a(f"v_perm_b32 v{buf+jj}, v{src+(2*jj+1)*4+(i>>1)}, v{src+(2*jj)*4+(i>>1)}, {sel}")
    perms(0,bufs[0],VR)
    a(f"v_mfma_f32_16x16x32_bf16 v[{DL}:{DL+3}], v[{ONE}:{ONE+3}], v[{PO}:{PO+3}], 0")
    for i in range(8):
        if i+1<8: perms(i+1,bufs[(i+1)%3],VR)
        else: a("s_nop 1")
        b=bufs[i%3]
        a(f"v_mfma_f32_16x16x32_bf16 v[{DR+4*i}:{DR+4*i+3}], v[{b}:{b+3}], v[{PO}:{PO+3}], 0")
    a(f"v_mov_b32 v17, v{DL}")
    a("s_mov_b32 exec_lo, 0x000f000f"); a("s_mov_b32 exec_hi, 0x000f000f")
    a("ds_write_b64 v9, v[16:17]")
    for i in range(7): a(f"ds_write_b128 v8, v[{DR+4*i}:{DR+4*i+3}] offset:{16*i}")
    a("s_nop 3")
    a(f"ds_write_b128 v8, v[{DR+28}:{DR+31}] offset:{16*7}")
    a("s_mov_b64 exec, -1")
    a("s_waitcnt lgkmcnt(0)")
    a("s_barrier")
    stamp(6)
    a("ds_read2_b64 v[20:23], v12 offset0:0 offset1:4")
    a("ds_read2_b64 v[24:27], v12 offset0:8 offset1:12")
    for w in range(4): a(f"ds_read_b64 v[{32+2*w}:{33+2*w}], v11 offset:{2112*w}")
    a("s_waitcnt lgkmcnt(%d)"%(0 if stamps else 4))
    a("v_max3_f32 v28, v20, v22, v24"); a("v_max_f32 v28, v28, v26")
    a("v_mul_f32 v29, s55, v28")
    for w in range(4): a(f"v_fma_f32 v{40+w}, v{20+2*w}, s55, -v29")
    for w in range(4): a(f"v_exp_f32 v{40+w}, v{40+w}")
    a("s_nop 0")
    a("v_mul_f32 v30, v40, v21")
    for w in range(1,4): a(f"v_fmac_f32 v30, v{40+w}, v{21+2*w}")
    a("v_rcp_f32 v31, v30"); a("v_log_f32 v44, v30")
    a("s_waitcnt lgkmcnt(0)")
    a("v_mul_f32 v46, v40, v32"); a("v_mul_f32 v47, v40, v33")
    for w in range(1,4):
        a(f"v_fmac_f32 v46, v{40+w}, v{32+2*w}"); a(f"v_fmac_f32 v47, v{40+w}, v{33+2*w}")
    a("v_mul_f32 v46, v46, v31"); a("v_mul_f32 v47, v47, v31")
    a("v_add_f32 v44, v44, v29")
    a(f"v_mov_b32 v49, {sTAG}"); a(f"v_mov_b32 v45, {sTAG}")
    a("v_cvt_pk_bf16_f32 v48, v46, v47")
    a(f"buffer_store_dwordx2 v[48:49], v13, s[36:39], 0 offen {STF}")
    a("s_mov_b64 exec, 1")
    a(f"buffer_store_dwordx2 v[44:45], v14, s[36:39], 0 offen {STF}")
    stamp(7)
    dump_stamps(8)
    a("s_endpgm")
    a("L_roleA:")
    a("; ---------------- role A")
    a(f"v_mov_b32 v2, {CNT}"); a("v_mov_b32 v3, 0"); a("ds_write_b32 v2, v3")
    a("v_mov_b32 v11, 0"); a("v_mov_b32 v12, 0")
    a("v_and_b32 v2, 3, v1")
    a("v_bfe_u32 v3, v1, 2, 2")
    a("v_lshrrev_b32 v4, 4, v1")
    a(f"s_lshl_b32 s34, {sW}, 7")
    a("v_lshlrev_b32 v5, 5, v3"); a("v_lshl_add_u32 v5, v4, 3, v5"); a("v_add_u32 v5, s34, v5")
    a("v_lshlrev_b32 v6, 10, v2"); a("v_lshl_add_u32 v8, v5, 1, v6")
    a("v_lshrrev_b32 v7, 2, v1"); a("v_lshl_add_u32 v7, v7, 6, v6")
    a(f"s_cmp_lt_u32 {sI}, 16")
    a("s_mov_b32 s56, 3584"); a("s_cselect_b32 s56, 8192, s56")
    a("s_cselect_b32 s57, 3, 1")
    a(f"s_lshl_b32 s34, {sX}, 10"); a(f"s_lshl_b32 s35, {sI}, 6"); a("s_add_u32 s34, s34, s35")
    a(f"s_mul_i32 s35, {sX}, 448"); a(f"s_lshl_b32 s58, {sI}, 5"); a("s_add_u32 s35, s35, s58"); a("s_sub_u32 s35, s35, 512")
    a(f"s_cmp_lt_u32 {sI}, 16")
    a("s_cselect_b32 s58, s34, s35")
    a("v_and_b32 v9, s57, v1"); a("v_lshlrev_b32 v9, 4, v9")
    a("v_mad_u32_u24 v9, v5, s56, v9"); a("v_add_u32 v9, s58, v9")
    a("v_bfe_i32 v10, v1, 1, 1")
    a("s_waitcnt lgkmcnt(0)")
    a(f"s_load_dword {sEP}, s[26:27], 0")
    srd(40,4,4096); srd(36,26,1<<28)
    a(f"s_cmp_lt_u32 {sI}, 16")
    a("s_cselect_b32 s44, s10, s16"); a("s_cselect_b32 s45, s11, s17")
    a("s_cselect_b32 s46, s10, s18"); a("s_cselect_b32 s47, s11, s19")
    a("s_sub_u32 s46, s46, s44"); a("s_subb_u32 s47, s47, s45")
    a("s_mov_b32 s57, 0")
    a(f"s_cmp_ge_u32 {sI}, 30"); a("s_cbranch_scc1 L_A_noload")
    XS=16; XO=32; XN=36; WR=48; BB=80; DA=96
    for k in range(4): a(f"buffer_load_dwordx4 v[{XS+4*k}:{XS+4*k+3}], v7, s[40:43], 0 offen offset:{16*k}")
    a(f"buffer_load_dwordx4 v[{XO}:{XO+3}], v8, s[40:43], 0 offen")
    a("v_and_b32 v12, s46, v10"); a("v_and_b32 v13, s47, v10")
    a("v_add_co_u32 v12, vcc, v12, v9"); a("s_nop 1"); a("v_addc_co_u32 v13, vcc, 0, v13, vcc")
    a("v_lshl_add_u64 v[12:13], v[12:13], 0, s[44:45]")
    for j in range(8):
        a(f"global_load_dwordx4 v[{WR+4*j}:{WR+4*j+3}], v[12:13], off {NTW}")
        if j<7: a("v_lshl_add_u64 v[12:13], v[12:13], 0, s[56:57]")
    a("L_A_noload:")
    stamp(1)
    a("s_barrier")
    a(f"s_mul_i32 s34, {sW}, {4*528}"); a("v_mul_u32_u24 v14, 528, v4"); a("v_lshl_add_u32 v14, v2, 7, v14"); a("v_add_u32 v14, s34, v14")
    a("v_mul_u32_u24 v40, 528, v3"); a("v_lshl_add_u32 v40, v4, 5, v40"); a("v_lshl_add_u32 v40, v2, 2, v40")
    a(f"s_lshl_b32 s34, {sW}, 7"); a("v_add_u32 v40, s34, v40")
    for pp in range(1,4): a(f"v_add_u32 v{40+pp}, {2112*pp}, v40")
    a(f"s_lshl_b32 s34, {sX}, 13"); a(f"s_lshl_b32 s35, {sI}, 7"); a("s_add_u32 s34, s34, s35"); a(f"s_lshl_b32 s35, {sW}, 5"); a("s_add_u32 s34, s34, s35")
    a(f"s_add_u32 s34, s34, {QOFF}")
    a("v_lshlrev_b32 v44, 11, v2"); a("v_lshl_add_u32 v44, v4, 3, v44"); a("v_add_u32 v44, s34, v44")
    a(f"s_lshl_b32 s34, {sX}, 12"); a(f"s_lshl_b32 s35, {sI}, 6"); a("s_add_u32 s34, s34, s35"); a(f"s_lshl_b32 s35, {sW}, 5"); a("s_add_u32 s34, s34, s35")
    a(f"s_add_u32 s34, s34, {HOFF-16*64}")
    a("v_lshlrev_b32 v45, 10, v2"); a("v_lshl_add_u32 v45, v4, 3, v45"); a("v_add_u32 v45, s34, v45")
    a(f"s_lshr_b32 s35, {sI}, 3"); a(f"s_lshl_b32 s34, {sX}, 2"); a("s_add_u32 s34, s34, s35"); a("s_lshl_b32 s34, s34, 11")
    a(f"s_lshl_b32 s35, {sW}, 7"); a("s_add_u32 s34, s34, s35"); a(f"s_add_u32 s34, s34, {QOFF}")
    a("v_lshlrev_b32 v46, 9, v2"); a("v_lshl_add_u32 v46, v4, 5, v46"); a("v_add_u32 v46, s34, v46")
    a(f"s_lshl_b32 s34, {sW}, 10"); a(f"s_add_u32 s34, s34, {QL}"); a("v_lshlrev_b32 v47, 4, v1"); a("v_add_u32 v47, s34, v47")
    a(f"s_cmp_ge_u32 {sI}, 30"); a("s_cbranch_scc1 L_A_qgather0")
    a("s_mov_b32 s58, 0x3f803f80")
    a("s_waitcnt vmcnt(8)")
    stamp(2)
    a(f"v_mov_b32 v10, 0"); a("v_mov_b32 v11, 0")
    for k in range(16):
        a(f"v_dot2_f32_bf16 v10, v{XS+k}, s58, v10")
        a(f"v_dot2_f32_bf16 v11, v{XS+k}, v{XS+k}, v11")
    a("s_nop 2")
    a("v_add_f32_dpp v10, v10, v10 row_ror:4 row_mask:0xf bank_mask:0xf")
    a("v_add_f32_dpp v11, v11, v11 row_ror:4 row_mask:0xf bank_mask:0xf")
    a("s_nop 0")
    a("v_add_f32_dpp v10, v10, v10 row_ror:8 row_mask:0xf bank_mask:0xf")
    a("v_add_f32_dpp v11, v11, v11 row_ror:8 row_mask:0xf bank_mask:0xf")
    for sw in ("v_permlane16_swap_b32","v_permlane32_swap_b32"):
        a("v_mov_b32 v12, v10"); a("v_mov_b32 v13, v11"); a("s_nop 0")
        a(f"{sw} v10, v12"); a(f"{sw} v11, v13")
        a("v_add_f32 v10, v10, v12"); a("v_add_f32 v11, v11, v13")
    inv=hx(f2u(1.0/512))
    a(f"v_mul_f32 v10, {inv}, v10")
    a(f"v_mul_f32 v11, {inv}, v11")
    a("v_fma_f32 v11, -v10, v10, v11")
    a(f"v_max_f32 v11, 0, v11")
    a(f"v_add_f32 v11, {hx(f2u(1e-5))}, v11")
    a("v_rsq_f32 v11, v11")
    a("s_nop 0")
    a("v_mul_f32 v10, v10, v11")
    for k in range(4):
        a(f"v_lshlrev_b32 v{16+2*k}, 16, v{XO+k}"); a(f"v_and_b32 v{17+2*k}, 0xffff0000, v{XO+k}")
    for k in range(8): a(f"v_fma_f32 v{16+k}, v{16+k}, v11, -v10")
    for k in range(4): a(f"v_cvt_pk_bf16_f32 v{XN+k}, v{16+2*k}, v{17+2*k}")
    a("s_waitcnt vmcnt(0)")
    stamp(3)
    bufs=[BB,BB+4,BB+8]
    perms(0,bufs[0],WR)
    for i in range(8):
        if i+1<8: perms(i+1,bufs[(i+1)%3],WR)
        else: a("s_nop 1")
        b=bufs[i%3]
        a(f"v_mfma_f32_16x16x32_bf16 v[{DA+4*i}:{DA+4*i+3}], v[{XN}:{XN+3}], v[{b}:{b+3}], 0")
    a("s_mov_b32 exec_lo, 0x00f0000f"); a("s_mov_b32 exec_hi, 0xf0000f00")
    a("s_nop 1")
    for i in range(7): a(f"ds_write_b128 v14, v[{DA+4*i}:{DA+4*i+3}] offset:{16*i}")
    a("s_nop 0")
    a(f"ds_write_b128 v14, v[{DA+28}:{DA+31}] offset:{16*7}")
    a("s_mov_b64 exec, 1")
    a(f"v_mov_b32 v10, {CNT}"); a("v_mov_b32 v11, 1")
    a("ds_add_u32 v10, v11")
    a("s_mov_b64 exec, -1")
    a("L_A1spin:")
    a("ds_read_b32 v11, v10"); a("s_waitcnt lgkmcnt(0)")
    a("v_readfirstlane_b32 s34, v11")
    spin_check(1); fails.add(1)
    a("s_cmp_lt_u32 s34, 4"); a("s_cbranch_scc1 L_A1spin")
    tagcalc()
    stamp(4)
    a(f"s_cmp_lt_u32 {sI}, 16"); a("s_cbranch_scc0 L_A_ffn")
    for pp in range(4): a(f"ds_read2_b32 v[{16+2*pp}:{17+2*pp}], v{40+pp} offset0:0 offset1:4")
    a("s_waitcnt lgkmcnt(0)")
    a("v_pk_add_f32 v[16:17], v[16:17], v[18:19]"); a("v_pk_add_f32 v[20:21], v[20:21], v[22:23]"); a("v_pk_add_f32 v[16:17], v[16:17], v[20:21]")
    a("s_nop 1")
    for ror in (4,8):
        a(f"v_add_f32_dpp v16, v16, v16 row_ror:{ror} row_mask:0xf bank_mask:0xf")
        a(f"v_add_f32_dpp v17, v17, v17 row_ror:{ror} row_mask:0xf bank_mask:0xf")
        a("s_nop 0")
    a(f"v_mov_b32 v19, {sTAG}")
    a("v_cvt_pk_bf16_f32 v18, v16, v17")
    a("s_mov_b32 exec_lo, 0x000f000f"); a("s_mov_b32 exec_hi, 0x000f000f")
    a(f"buffer_store_dwordx2 v[18:19], v44, s[36:39], 0 offen {STF}")
    a("s_mov_b64 exec, -1")
    a("s_branch L_A_qgather")
    a("L_A_ffn:")
    a(f"s_cmp_ge_u32 {sW}, 2"); a("s_cbranch_scc1 L_A_qgather")
    for pp in range(4):
        a(f"ds_read2_b32 v[{16+2*pp}:{17+2*pp}], v{40+pp} offset0:0 offset1:4")
        a(f"ds_read2_b32 v[{24+2*pp}:{25+2*pp}], v{40+pp} offset0:64 offset1:68")
    a("s_waitcnt lgkmcnt(0)")
    for base in (16,24):
        a(f"v_pk_add_f32 v[{base}:{base+1}], v[{base}:{base+1}], v[{base+2}:{base+3}]"); a(f"v_pk_add_f32 v[{base+4}:{base+5}], v[{base+4}:{base+5}], v[{base+6}:{base+7}]")
        a(f"v_pk_add_f32 v[{base}:{base+1}], v[{base}:{base+1}], v[{base+4}:{base+5}]")
    a("s_nop 1")
    for ror in (4,8):
        for r in (16,17,24,25): a(f"v_add_f32_dpp v{r}, v{r}, v{r} row_ror:{ror} row_mask:0xf bank_mask:0xf")
    k1=hx(f2u(0.044715)); k2=hx(f2u(-2.0*0.7978845608028654*1.4426950408889634))
    a(f"s_mov_b32 s34, {k1}"); a(f"s_mov_b32 s35, {k2}")
    for r,u,t in ((16,24,20),(17,25,21)):
        a(f"v_mul_f32 v{t}, v{r}, v{r}")
    for r,u,t in ((16,24,20),(17,25,21)):
        a(f"v_fma_f32 v{t}, v{t}, s34, 1.0")
    for r,u,t in ((16,24,20),(17,25,21)):
        a(f"v_mul_f32 v{t}, v{t}, v{r}")
    for r,u,t in ((16,24,20),(17,25,21)):
        a(f"v_mul_f32 v{t}, s35, v{t}")
    for r,u,t in ((16,24,20),(17,25,21)):
        a(f"v_exp_f32 v{t}, v{t}")
    a("s_nop 0")
    for r,u,t in ((16,24,20),(17,25,21)):
        a(f"v_add_f32 v{t}, 1.0, v{t}")
    for r,u,t in ((16,24,20),(17,25,21)):
        a(f"v_rcp_f32 v{t}, v{t}")
    a("s_nop 0")
    for r,u,t in ((16,24,20),(17,25,21)):
        a(f"v_mul_f32 v{t}, v{t}, v{r}")
    for r,u,t in ((16,24,20),(17,25,21)):
        a(f"v_mul_f32 v{t}, v{t}, v{u}")
    a(f"v_mov_b32 v19, {sTAG}")
    a("v_cvt_pk_bf16_f32 v18, v20, v21")
    a("s_mov_b32 exec_lo, 0x000f000f"); a("s_mov_b32 exec_hi, 0x000f000f")
    a(f"buffer_store_dwordx2 v[18:19], v45, s[36:39], 0 offen {STF}")
    a("s_mov_b64 exec, -1")
    a("s_branch L_A_qgather")
    a("L_A_qgather0:")
    a("s_waitcnt lgkmcnt(0)")
    tagcalc()
    a("L_A_qgather:")
    stamp(5)
    a("L_A_qpoll:")
    a(f"buffer_load_dwordx4 v[16:19], v46, s[36:39], 0 offen {LDF}")
    a(f"buffer_load_dwordx4 v[20:23], v46, s[36:39], 0 offen offset:16 {LDF}")
    a("s_waitcnt vmcnt(0)")
    a(f"v_xor_b32 v24, {sTAG}, v17")
    for r in (19,21,23): a(f"v_bitop3_b32 v24, v{r}, {sTAG}, v24 bitop3:0xbe")
    a("v_cmp_ne_u32 vcc, 0, v24")
    spin_check(2); fails.add(2)
    a("s_cbranch_vccnz L_A_qpoll")
    a("ds_write2_b32 v47, v16, v18 offset0:0 offset1:1")
    a("ds_write2_b32 v47, v20, v22 offset0:2 offset1:3")
    a("s_waitcnt lgkmcnt(0)")
    a("s_barrier")
    stamp(6)
    a("v_and_b32 v5, 15, v1")
    a(f"s_lshr_b32 s56, {sI}, 2")
    a(f"s_and_b32 s57, {sI}, 3")
    a(f"s_cmp_eq_u32 {sW}, 3"); a("s_cbranch_scc1 L_A_w3")
    a(f"s_cmp_eq_u32 {sW}, 2"); a("s_cbranch_scc1 L_A_wd")
    srd(40,12,4194304)
    a(f"s_lshl_b32 s34, {sX}, 9"); a("s_lshl_b32 s35, s56, 6"); a("s_add_u32 s34, s34, s35"); a(f"s_lshl_b32 s35, {sW}, 5"); a("s_add_u32 s34, s34, s35")
    a("s_lshl_b32 s34, s34, 10"); a("s_lshl_b32 s35, s57, 8"); a("s_add_u32 s34, s34, s35")
    a("v_lshlrev_b32 v6, 4, v5"); a("v_lshl_add_u32 v6, v4, 11, v6"); a("v_add_u32 v6, s34, v6")
    for j in range(8):
        off=(8*(j&3)+(j>>2))*1024
        if off<4096: a(f"buffer_load_dwordx4 v[{WR+4*j}:{WR+4*j+3}], v6, s[40:43], 0 offen offset:{off} {NTW}")
        else:
            a(f"s_mov_b32 s35, {off}")
            a(f"buffer_load_dwordx4 v[{WR+4*j}:{WR+4*j+3}], v6, s[40:43], s35 offen {NTW}")
    a(f"s_lshl_b32 s34, {sX}, 2"); a("s_lshr_b32 s35, s56, 1"); a("s_add_u32 s58, s34, s35")
    a("s_lshl_b32 s34, s58, 14"); a("s_and_b32 s35, s56, 1"); a("s_lshl_b32 s35, s35, 8"); a("s_add_u32 s34, s34, s35")
    a(f"s_lshl_b32 s35, {sW}, 7"); a("s_add_u32 s34, s34, s35"); a(f"s_add_u32 s34, s34, {OOFF}")
    a("v_lshrrev_b32 v7, 2, v5"); a("v_and_b32 v8, 3, v5")
    a("v_lshlrev_b32 v9, 12, v7"); a("v_lshl_add_u32 v9, v8, 9, v9"); a("v_lshl_add_u32 v9, v4, 5, v9"); a("v_add_u32 v9, s34, v9")
    a("s_lshl_b32 s34, s58, 8"); a(f"s_add_u32 s34, s34, {ZOFF}")
    a("v_lshlrev_b32 v10, 6, v7"); a("v_lshl_add_u32 v10, v8, 3, v10"); a("v_add_u32 v10, s34, v10")
    a("s_branch L_A_perm")
    a("L_A_wd:")
    srd(40,20,1835008)
    a(f"s_mul_i32 s34, {sX}, 224"); a("s_mul_i32 s35, s56, 28"); a("s_add_u32 s34, s34, s35"); a("s_lshl_b32 s34, s34, 10")
    a("s_lshl_b32 s35, s57, 8"); a("s_add_u32 s34, s34, s35")
    a("v_lshlrev_b32 v6, 4, v5"); a("v_lshl_add_u32 v6, v4, 13, v6"); a("v_add_u32 v6, s34, v6")
    a("v_mov_b32 v7, 0x40000000"); a("v_cmp_eq_u32 vcc, 3, v4"); a("s_nop 1"); a("v_cndmask_b32 v7, v6, v7, vcc")
    for j in range(8):
        if j<4: a(f"buffer_load_dwordx4 v[{WR+4*j}:{WR+4*j+3}], v6, s[40:43], 0 offen offset:{j*1024} {NTW}")
        else: a(f"buffer_load_dwordx4 v[{WR+4*j}:{WR+4*j+3}], v7, s[40:43], s52 offen offset:{(j-4)*1024} {NTW}")
    a("L_A_perm:")
    a("s_waitcnt vmcnt(0)")
    stamp(7)
    for i in range(8): perms(i,DA+4*i,WR)
    a("s_branch L_A_B1")
    a("L_A_w3:")
    a(f"s_lshl_b32 s34, {sX}, 12"); a("s_mul_i32 s35, s56, 112"); a("s_add_u32 s34, s34, s35"); a(f"s_add_u32 s34, s34, {HOFF}")
    a("v_lshrrev_b32 v7, 2, v5"); a("v_lshlrev_b32 v7, 10, v7"); a("v_lshl_add_u32 v7, v4, 5, v7"); a("v_add_u32 v7, s34, v7")
    a("v_add_u32 v8, 16, v7"); a("v_mov_b32 v9, 0x20000000"); a("v_cmp_eq_u32 vcc, 3, v4"); a("s_nop 1"); a("v_cndmask_b32 v8, v8, v9, vcc")
    a("v_mov_b32 v10, 0"); a("v_mov_b32 v9, -1"); a("v_cndmask_b32 v9, v9, v10, vcc")
    srd(40,4,4096)
    a("s_lshr_b32 s34, s2, 4"); a("s_and_b32 s34, s34, 3"); a("s_lshl_b32 s34, s34, 10")
    a("s_lshr_b32 s35, s2, 6"); a("s_lshl_b32 s35, s35, 8"); a("s_add_u32 s34, s34, s35")
    a("s_and_b32 s35, s2, 15"); a("s_lshl_b32 s35, s35, 4"); a("s_add_u32 s34, s34, s35")
    a("v_and_b32 v11, 3, v1"); a("v_lshlrev_b32 v11, 2, v11"); a("v_add_u32 v11, s34, v11")
    a("buffer_load_dword v12, v11, s[40:43], 0 offen")
    a("L_A_hpoll:")
    a(f"buffer_load_dwordx4 v[16:19], v7, s[36:39], 0 offen {LDF}")
    a(f"buffer_load_dwordx4 v[20:23], v8, s[36:39], 0 offen {LDF}")
    a("s_waitcnt vmcnt(0)")
    a(f"v_xor_b32 v24, {sTAG}, v21"); a(f"v_bitop3_b32 v24, v23, {sTAG}, v24 bitop3:0xbe"); a("v_and_b32 v24, v24, v9")
    for r in (17,19): a(f"v_bitop3_b32 v24, v{r}, {sTAG}, v24 bitop3:0xbe")
    a("v_cmp_ne_u32 vcc, 0, v24")
    spin_check(3); fails.add(3)
    a("s_cbranch_vccnz L_A_hpoll")
    a(f"v_lshlrev_b32 v13, 4, v1"); a(f"v_add_u32 v13, {HL}, v13")
    a("ds_write2_b32 v13, v16, v18 offset0:0 offset1:1")
    a("ds_write2_b32 v13, v20, v22 offset0:2 offset1:3")
    a("s_waitcnt lgkmcnt(0)")
    a("L_A_B1:")
    a(f"s_mul_i32 s34, {sW}, {PCS}"); a(f"s_add_u32 s34, s34, {PC}")
    a("v_mul_u32_u24 v14, 576, v4"); a("v_mad_u32_u24 v14, v5, 36, v14"); a("v_add_u32 v14, s34, v14")
    a(f"s_mul_i32 s34, {sW}, 576"); a(f"s_add_u32 s34, s34, {PC}")
    a("v_lshrrev_b32 v15, 2, v1"); a("v_mul_u32_u24 v15, 36, v15"); a("v_and_b32 v40, 3, v1"); a("v_lshl_add_u32 v15, v40, 3, v15"); a("v_add_u32 v15, s34, v15")
    a("s_lshl_b32 s34, s57, 6"); a(f"s_lshl_b32 s35, {sW}, 4"); a("s_add_u32 s34, s34, s35"); a("s_lshl_b32 s34, s34, 12")
    a(f"s_lshl_b32 s35, {sX}, 3"); a("s_add_u32 s35, s35, s56"); a("s_lshl_b32 s35, s35, 6"); a("s_add_u32 s34, s34, s35"); a(f"s_add_u32 s34, s34, {DOFF}")
    a("v_lshrrev_b32 v41, 2, v1"); a("v_lshlrev_b32 v41, 12, v41"); a("v_lshl_add_u32 v41, v40, 4, v41"); a("v_add_u32 v41, s34, v41")
    a("s_barrier")
    stamp(8)
    a(f"s_cmp_eq_u32 {sW}, 3"); a("s_cbranch_scc1 L_A_C1")
    a(f"s_cmp_eq_u32 {sW}, 2"); a("s_cbranch_scc1 L_A_hop")
    a("L_A_opoll:")
    a(f"buffer_load_dwordx4 v[16:19], v9, s[36:39], 0 offen {LDF}")
    a(f"buffer_load_dwordx4 v[20:23], v9, s[36:39], 0 offen offset:16 {LDF}")
    a(f"buffer_load_dwordx4 v[24:27], v9, s[36:39], 0 offen offset:2048 {LDF}")
    a(f"buffer_load_dwordx4 v[28:31], v9, s[36:39], 0 offen offset:2064 {LDF}")
    a(f"buffer_load_dwordx2 v[32:33], v10, s[36:39], 0 offen {LDF}")
    a(f"buffer_load_dwordx2 v[34:35], v10, s[36:39], 0 offen offset:32 {LDF}")
    a("s_waitcnt vmcnt(0)")
    a(f"v_xor_b32 v36, {sTAG}, v17")
    for r in (19,21,23,25,27,29,31,33,35): a(f"v_bitop3_b32 v36, v{r}, {sTAG}, v36 bitop3:0xbe")
    a("v_cmp_ne_u32 vcc, 0, v36")
    spin_check(4); fails.add(4)
    a("s_cbranch_vccnz L_A_opoll")
    stamp(9)
    a("v_max_f32 v36, v32, v34"); a("s_nop 1")
    a("v_max_f32_dpp v36, v36, v36 quad_perm:[1,0,3,2] row_mask:0xf bank_mask:0xf"); a("s_nop 1")
    a("v_max_f32_dpp v36, v36, v36 quad_perm:[2,3,0,1] row_mask:0xf bank_mask:0xf")
    a("v_sub_f32 v32, v32, v36"); a("v_sub_f32 v34, v34, v36")
    a("v_exp_f32 v32, v32"); a("v_exp_f32 v34, v34")
    for k,r in enumerate((16,18,20,22)):
        a(f"v_lshlrev_b32 v{48+2*k}, 16, v{r}"); a(f"v_and_b32 v{49+2*k}, 0xffff0000, v{r}")
    a("v_add_f32 v36, v32, v34")
    for k,r in enumerate((24,26)):
        a(f"v_lshlrev_b32 v{56+2*k}, 16, v{r}"); a(f"v_and_b32 v{57+2*k}, 0xffff0000, v{r}")
    a("v_add_f32_dpp v36, v36, v36 quad_perm:[1,0,3,2] row_mask:0xf bank_mask:0xf")
    for k,r in ((2,28),(3,30)):
        a(f"v_lshlrev_b32 v{56+2*k}, 16, v{r}"); a(f"v_and_b32 v{57+2*k}, 0xffff0000, v{r}")
    a("v_add_f32_dpp v36, v36, v36 quad_perm:[2,3,0,1] row_mask:0xf bank_mask:0xf")
    a("v_rcp_f32 v36, v36"); a("s_nop 0")
    a("v_mul_f32 v32, v32, v36"); a("v_mul_f32 v34, v34, v36")
    for k in range(4): a(f"v_pk_mul_f32 v[{48+2*k}:{49+2*k}], v[{48+2*k}:{49+2*k}], v[32:33] op_sel_hi:[1,0]")
    for k in range(4): a(f"v_pk_fma_f32 v[{48+2*k}:{49+2*k}], v[{56+2*k}:{57+2*k}], v[34:35], v[{48+2*k}:{49+2*k}] op_sel_hi:[1,0,1]")
    for k in range(8): a(f"v_add_f32_dpp v{48+k}, v{48+k}, v{48+k} quad_perm:[1,0,3,2] row_mask:0xf bank_mask:0xf")
    for k in range(8): a(f"v_add_f32_dpp v{48+k}, v{48+k}, v{48+k} quad_perm:[2,3,0,1] row_mask:0xf bank_mask:0xf")
    for k in range(4): a(f"v_cvt_pk_bf16_f32 v{XN+k}, v{48+2*k}, v{49+2*k}")
    a("s_branch L_A_cmfma")
    a("L_A_hop:")
    a(f"v_lshlrev_b32 v13, 4, v1"); a(f"v_add_u32 v13, {HL}, v13")
    a(f"ds_read_b128 v[{XN}:{XN+3}], v13")
    a("s_waitcnt lgkmcnt(0)")
    a("L_A_cmfma:")
    a("s_nop 1")
    DC=64
    for i in range(8):
        a(f"v_mfma_f32_16x16x32_bf16 v[{DC+4*i}:{DC+4*i+3}], v[{XN}:{XN+3}], v[{DA+4*i}:{DA+4*i+3}], 0")
    a("s_nop 7")
    for i in range(0,8,2):
        a(f"ds_write2_b32 v14, v{DC+4*i}, v{DC+4*i+4} offset0:{i} offset1:{i+1}")
    a("L_A_C1:")
    a("s_waitcnt lgkmcnt(0)")
    a("s_barrier")
    stamp(10)
    for s_ in range(3):
        if s_==0: a("ds_read2_b32 v[16:17], v15 offset0:0 offset1:1")
        else:
            a(f"v_add_u32 v40, {PCS*s_}, v15"); a(f"ds_read2_b32 v[{16+2*s_}:{17+2*s_}], v40 offset0:0 offset1:1")
    a("s_waitcnt lgkmcnt(0)")
    a("v_pk_add_f32 v[16:17], v[16:17], v[18:19]"); a("v_pk_add_f32 v[16:17], v[16:17], v[20:21]")
    a(f"v_mov_b32 v25, {sTAG}"); a(f"v_mov_b32 v27, {sTAG}")
    a("v_mov_b32 v24, v16"); a("v_mov_b32 v26, v17")
    a(f"buffer_store_dwordx4 v[24:27], v41, s[36:39], 0 offen {STF}")
    a(f"s_cmp_eq_u32 {sW}, 3"); a("s_cbranch_scc0 L_A_done")
    a(f"s_lshl_b32 s34, s2, 12"); a(f"s_add_u32 s34, s34, {DOFF}")
    a("v_lshlrev_b32 v7, 4, v1"); a("v_add_u32 v7, s34, v7")
    srd(44,22,4096)
    a("L_A_dpoll:")
    for k in range(4): a(f"buffer_load_dwordx4 v[{16+4*k}:{19+4*k}], v7, s[36:39], 0 offen offset:{1024*k} {LDF}")
    a("s_waitcnt vmcnt(0)")
    a(f"v_xor_b32 v36, {sTAG}, v17")
    for r in (19,21,23,25,27,29,31): a(f"v_bitop3_b32 v36, v{r}, {sTAG}, v36 bitop3:0xbe")
    a("v_cmp_ne_u32 vcc, 0, v36")
    spin_check(5); fails.add(5)
    a("s_cbranch_vccnz L_A_dpoll")
    stamp(11)
    a("v_add_f32 v16, v16, v20"); a("v_add_f32 v18, v18, v22"); a("v_add_f32 v24, v24, v28"); a("v_add_f32 v26, v26, v30")
    a("v_add_f32 v16, v16, v24"); a("v_add_f32 v18, v18, v26")
    a("s_nop 0")
    for ror in (4,8):
        a(f"v_add_f32_dpp v16, v16, v16 row_ror:{ror} row_mask:0xf bank_mask:0xf")
        a(f"v_add_f32_dpp v18, v18, v18 row_ror:{ror} row_mask:0xf bank_mask:0xf")
        a("s_nop 0")
    for sw in ("v_permlane16_swap_b32","v_permlane32_swap_b32"):
        a("v_mov_b32 v20, v16"); a("v_mov_b32 v21, v18"); a("s_nop 0")
        a(f"{sw} v16, v20"); a(f"{sw} v18, v21")
        a("v_add_f32 v16, v16, v20"); a("v_add_f32 v18, v18, v21")
    a("v_lshlrev_b32 v20, 16, v12"); a("v_and_b32 v21, 0xffff0000, v12")
    a("v_add_f32 v16, v16, v20"); a("v_add_f32 v18, v18, v21")
    a("v_cvt_pk_bf16_f32 v16, v16, v18")
    a("s_mov_b64 exec, 15")
    a("buffer_store_dword v16, v11, s[44:47], 0 offen")
    a("s_cmp_eq_u32 s2, 0"); a("s_cbranch_scc0 L_A_done")
    a("s_mov_b64 exec, 1")
    a(f"v_mov_b32 v16, {sTAG}"); a("v_mov_b32 v17, 0")
    a(f"buffer_store_dword v16, v17, s[36:39], 0 offen {STF}")
    a("L_A_done:")
    stamp(12)
    dump_stamps(13)
    a("s_endpgm")
    for c in sorted(fails):
        a(f"L_fail{c}:")
        a("s_mov_b64 exec, 1")
        a(f"s_mov_b32 s34, s24"); a("s_mov_b32 s40, s24"); a("s_and_b32 s41, s25, 0xffff"); a("s_mov_b32 s42, 256"); a("s_mov_b32 s43, 0x20000")
        a(f"v_mov_b32 v2, {4*c}"); a("v_mov_b32 v3, s2"); a("v_add_u32 v3, 0x10000, v3")
        a("buffer_store_dword v3, v2, s[40:43], 0 offen")
        a("s_endpgm")
    a("L_end:")
    a("s_endpgm")
    a(kd(KN, opt.get("vgpr",168), 102))
    return a.text()

if __name__=="__main__":
    opt={}
    out="main"
    for arg in sys.argv[1:]:
        k,v=arg.split("=",1)
        if k=="out": out=v
        elif v in("0","1") : opt[k]=bool(int(v))
        else:
            try: opt[k]=int(v)
            except: opt[k]=v
    t=gen(opt)
    for p in lint.lint(t): print("HAZARD",p)
    build(t,out,KN)
    print("built",out, len(t))
```

```python
import re,sys
TRANS=("v_exp_f32","v_log_f32","v_rcp_f32","v_rsq_f32","v_sqrt_f32","v_sin_f32","v_cos_f32","v_rcp_iflag_f32")
def regs(op):
    op=op.strip()
    neg=op.lstrip("-")
    if neg.startswith("abs(") or neg.startswith("|"): neg=neg.replace("abs(","").replace(")","").replace("|","")
    m=re.fullmatch(r"([vsa])(\d+)",neg)
    if m: return {(m.group(1),int(m.group(2)))}
    m=re.fullmatch(r"([vsa])\[(\d+):(\d+)\]",neg)
    if m: return {(m.group(1),k) for k in range(int(m.group(2)),int(m.group(3))+1)}
    if neg=="vcc": return {("s","vcc_lo"),("s","vcc_hi")}
    if neg in("vcc_lo","vcc_hi"): return {("s",neg)}
    if neg=="exec": return {("s","exec_lo"),("s","exec_hi")}
    if neg in("exec_lo","exec_hi"): return {("s",neg)}
    if neg=="m0": return {("s","m0")}
    return set()
class I:
    def __init__(s,text,ln):
        s.text=text; s.ln=ln
        t=text.split(None,1); s.op=t[0]; rest=t[1] if len(t)>1 else ""
        parts=[];d=0;cur=""
        for ch in rest:
            if ch=="[":d+=1
            if ch=="]":d-=1
            if ch=="," and d==0: parts.append(cur);cur=""
            else: cur+=ch
        if cur.strip(): parts.append(cur)
        ops=[]
        s.mods=""
        for k,p in enumerate(parts):
            p=p.strip()
            if k==len(parts)-1:
                q=p.split(None,1)
                if len(q)>1: s.mods=q[1]
                p=q[0] if q else p
            ops.append(p)
        s.ops=ops
        op=s.op
        s.valu=op.startswith("v_")
        s.mfma=op.startswith("v_mfma")
        s.dpp=("_dpp" in op) or ("row_" in s.mods) or ("quad_perm" in s.mods)
        s.perml=op.startswith("v_permlane")
        s.trans=any(op.startswith(x) for x in TRANS)
        s.vmem=op.startswith("buffer_") or op.startswith("global_") or op.startswith("flat_")
        s.ds=op.startswith("ds_")
        s.salu=op.startswith("s_")
        s.w=set(); s.r=set()
        R=[regs(o) for o in ops]
        if s.valu:
            if op.startswith("v_cmpx"):
                s.w=R[0]|regs("exec"); s.r=set().union(*R[1:])
            elif op.startswith("v_cmp"):
                s.w=R[0]; s.r=set().union(*R[1:])
            elif s.perml:
                s.w=R[0]|R[1]; s.r=R[0]|R[1]
            elif op.startswith(("v_add_co","v_sub_co","v_addc_co","v_subb_co","v_subrev_co")):
                s.w=R[0]|R[1]; s.r=set().union(*R[2:])
            elif op.startswith(("v_fmac","v_dot2c","v_pk_fmac")):
                s.w=R[0]; s.r=set().union(*R)
            elif op.startswith("v_nop"):
                pass
            else:
                s.w=R[0]; s.r=set().union(*R[1:]) if len(R)>1 else set()
                if op.startswith("v_cndmask") and len(ops)==3: s.r|=regs("vcc")
            if s.dpp and not op.startswith("v_fmac"): pass
            if s.mfma:
                s.D=R[0]; s.A=R[1]; s.B=R[2]; s.C=R[3]
                s.passes=8 if "32x32" in op else 4
        elif s.vmem:
            st="store" in op or ("atomic" in op)
            lds=" lds" in (" "+s.mods)
            if op.startswith("buffer_"):
                if lds: s.r=set().union(*R)
                elif st: s.r=set().union(*R)
                else: s.w=R[0]; s.r=set().union(*R[1:])
            else:
                if st: s.r=set().union(*R)
                else: s.w=R[0]; s.r=set().union(*R[1:])
            s.store=st
            s.wide=st and ("x4" in op or "x3" in op)
            if s.wide:
                s.data = R[0] if op.startswith("buffer_") else R[1]
        elif s.ds:
            if op.startswith(("ds_read","ds_bpermute","ds_permute","ds_swizzle")): s.w=R[0]; s.r=set().union(*R[1:]) if len(R)>1 else set()
            else: s.r=set().union(*R)
        elif s.salu:
            if op.startswith(("s_cmp","s_cbranch","s_branch","s_waitcnt","s_nop","s_barrier","s_endpgm","s_setprio","s_sleep")):
                s.r=set().union(*R) if R else set()
            else:
                s.w=R[0] if R else set(); s.r=set().union(*R[1:]) if len(R)>1 else set()
                if "saveexec" in op: s.w|=regs("exec")
        s.states = 1
        if op=="s_nop": s.states=int(ops[0],0)+1
def lint(text):
    ins=[];labels={}
    for ln,l in enumerate(text.split("\n"),1):
        l=l.split(";")[0].strip()
        if not l or l.startswith("."): continue
        if l.endswith(":"): labels[l[:-1]]=len(ins); continue
        if re.match(r"^(s_|v_|ds_|buffer_|global_|flat_)",l): ins.append(I(l,ln))
    probs=[]
    def check(seq):
        for a in range(len(seq)):
            p=ins[seq[a]]
            if not (p.w or p.mfma or getattr(p,"wide",False)): continue
            dist=0
            for b in range(a+1,min(len(seq),a+24)):
                c=ins[seq[b]]
                def need(n,why):
                    if dist<n: probs.append((p.ln,c.ln,why,n,dist,p.text,c.text))
                vw={x for x in p.w if x[0] in"va"}; sw={x for x in p.w if x[0]=="s"}
                if p.valu and not p.mfma:
                    if c.dpp and (vw & c.r): need(2,"VALU->DPP")
                    if c.perml and (vw & c.r): need(2,"VALU->permlane")
                    if c.mfma and (vw & c.r): need(2,"VALU->MFMA")
                    if c.op.startswith(("v_readlane","v_readfirstlane")) and (vw & c.r): need(1,"VALU->readlane")
                    if p.trans and c.valu and not c.trans and (vw & c.r): need(1,"trans->VALU")
                    if p.trans and (c.vmem or c.ds) and (vw & c.r): need(1,"trans->mem(cons)")
                    if sw:
                        ex={("s","exec_lo"),("s","exec_hi")}
                        sw2=sw-ex
                        if c.valu and (sw2 & c.r): need(2,"VALU sgpr->VALU read")
                        if c.vmem and (sw2 & c.r): need(5,"VALU sgpr->VMEM")
                        if (sw&ex):
                            if c.dpp: need(5,"VALU exec->DPP")
                            if c.mfma: need(4,"VALU exec->MFMA")
                            if c.perml or c.op.startswith(("v_readlane","v_readfirstlane","v_writelane")): need(4,"cmpx->permlane/readlane")
                if p.mfma:
                    n=12 if p.passes==8 else 8
                    if c.mfma:
                        if p.D & (c.A|c.B): need(n,"MFMA D->MFMA A/B")
                        if (p.D & c.C) and p.D!=c.C: need(10 if p.passes==8 else 6,"MFMA D->partial C")
                    elif c.valu and (p.D & (c.r|c.w)): need(n,"MFMA D->VALU")
                    elif (c.vmem or c.ds) and (p.D & (c.r|c.w)): need(n,"MFMA D->mem")
                    if c.valu and not c.mfma and (p.C & c.w): need(7 if p.passes==8 else 3,"MFMA C WAR")
                if getattr(p,"wide",False):
                    if c.valu and (p.data & c.w): need(2,"wide store WAR valu")
                    elif (p.data & c.w): need(1,"wide store WAR")
                if p.salu and ("s","m0") in p.w and (c.vmem and " lds" in " "+c.mods): need(1,"m0->ldsdma")
                dist+=c.states
                if c.op in("s_branch","s_endpgm","s_setpc_b64"): break
    check(list(range(len(ins))))
    for k,i in enumerate(ins):
        if i.op.startswith(("s_cbranch","s_branch")):
            t=labels.get(i.ops[0])
            if t is None: continue
            pre=[]
            j=k
            while j>=0 and len(pre)<24:
                if j<k and ins[j].op in("s_branch","s_endpgm"): break
                pre.append(j); j-=1
            pre.reverse()
            post=list(range(t,min(len(ins),t+24)))
            seq=pre+post
            save=i.op; i.op="s_nopx"
            check(seq); i.op=save
    vm=[]; lg=[]
    for i in ins:
        if i.op in("s_branch","s_endpgm"):
            vm=[];lg=[]; continue
        if i.op=="s_waitcnt":
            m=re.search(r"vmcnt\((\d+)\)",i.text)
            if m:
                n=int(m.group(1)); vm=vm[len(vm)-n:] if n<len(vm) else vm
                if n==0: vm=[]
            m=re.search(r"lgkmcnt\((\d+)\)",i.text)
            if m:
                n=int(m.group(1)); lg=lg[len(lg)-n:] if n<len(lg) else lg
                if n==0: lg=[]
            continue
        touched=(i.r|i.w)
        for q,nm in((vm,"vm"),(lg,"lgkm")):
            for o in q:
                if o.w & touched and not (o.op==i.op and i.vmem and o.text==i.text):
                    probs.append((o.ln,i.ln,"outstanding-"+nm,0,0,o.text,i.text))
        if i.vmem: vm.append(i)
        if i.ds or i.op.startswith(("s_load","s_memrealtime","s_memtime")): lg.append(i)
    seen=set(); out=[]
    for p in probs:
        key=(p[0],p[1],p[2])
        if key in seen: continue
        seen.add(key); out.append(p)
    return out
if __name__=="__main__":
    for p in lint(open(sys.argv[1]).read()): print(p)
```

```python
import sys, struct
from asmlib import *
import lint

NAME="parallel_sum__sliding_block_cached__glu_gated_geglu__decode"
KN=NAME+"_kernel"
def f2u(x): return struct.unpack("<I",struct.pack("<f",x))[0]
def hx(x): return "0x%08x"%(x & 0xffffffff)

QOFF=0x10000; GUOFF=0x90000; ZOFF=0x110000; OOFF=0x120000; DOFF=0x200000; STOFF=0x400000
GD=0x1000000
LOCOFF=0x8000
WQ=0; WG=16384; WC=32768; XN=57344; QL=XN+1280; OL=QL+1280; ML=OL+8448; OB=ML+128; HB=OB+768; FL=HB+256; LDSZ=FL+64; F_LOC=FL+32
F_P,F_B,F_Q,F_B1,F_A,F_WG,F_WC,F_O=[FL+4*k for k in range(8)]
F_X=FL+36
F_H=FL+40
HEADER=open("cdna_kernels/%s.s.ref"%NAME).read().split("; Override launch")[0]

DOC="""; ---------------------------------------------------------------------------------------------------------------
; out = x + Attn(LN(x)) @ wo + (gelu(LN(x) @ wg) * (LN(x) @ wu)) @ wd          (decode, B=4, 32 q heads / 8 kv heads, last 1024 keys)
;
;                    sum the 64 partial rows of 16 outputs, add x and store.
; Hand-offs between workgroups: 8-byte granules {data, tag} in d_ws; tag = f(word 0 of d_ws), which workgroup 0 replaces by the tag at
; ---------------------------------------------------------------------------------------------------------------
"""

def gen(opt):
    a=A()
    stamps=opt.get("stamps",0)
    NT=opt.get("nt","nt")
    TSW=opt.get("tsw",64); SPIN=opt.get("spin",1<<16)
    PRED=opt.get("pred",1)
    a(HEADER.rstrip())
    a(f"; @launch grid=(256,1,1) block=(512,1,1) lds={LDSZ}")
    if opt.get("doc"): a(DOC.rstrip())
    a('.amdgcn_target "amdgcn-amd-amdhsa--gfx950"')
    a(".text")
    if opt.get("align",0): a(f".p2align {opt['align']}")
    a(head(KN))
    sX,sI,sW,sTAG,sEP="s29","s30","s31","s32","s33"
    sPATH,sCNT,sGD="s61","s60","s62"
    def stamp(k):
        if stamps: a(f"s_memrealtime s[{70+2*k}:{71+2*k}]")
    def wl(n): a("s_waitcnt lgkmcnt(%d)"%(0 if stamps else n))
    def dump_stamps(n):
        if not stamps: return
        a("s_waitcnt lgkmcnt(0)")
        a("s_lshl_b32 s34, s2, 3"); a("s_add_u32 s34, s34, s28"); a("s_lshl_b32 s34, s34, 6"); a(f"s_add_u32 s34, s34, {STOFF}")
        a("s_mov_b64 exec, 1"); a("v_mov_b32 v2, s34")
        for k in range(n):
            a(f"v_mov_b32 v3, s{70+2*k}"); a(f"buffer_store_dword v3, v2, s[36:39], 0 offen offset:{4*k}"); a("s_nop 0")
        a("s_lshl_b32 s97, s97, 10"); a("s_or_b32 s96, s96, s97"); a("s_lshl_b32 s98, s98, 20"); a("s_or_b32 s96, s96, s98")
        a("v_mov_b32 v3, s96"); a(f"buffer_store_dword v3, v2, s[36:39], 0 offen offset:56")
    def srd(d,p,size):
        a(f"s_mov_b32 s{d}, s{p}"); a(f"s_and_b32 s{d+1}, s{p+1}, 0xffff"); a(f"s_mov_b32 s{d+2}, {size}"); a(f"s_mov_b32 s{d+3}, 0x20000")
    fails=set()
    def tagcalc():
        a(f"s_mul_i32 {sTAG}, {sEP}, 0x9E3779B1"); a(f"s_add_u32 {sTAG}, {sTAG}, 0x7F4A7C15"); a(f"s_or_b32 {sTAG}, {sTAG}, 1")
    def poll(label, code, loads, tags, tmp, local=True, slp=0, mid=None, lazy=None):
        fails.add(code)
        so = sPATH if local else "0"
        def issue():
            for op,dst,va,off in loads:
                a(f"{op} {dst}, {va}, s[36:39], {so} offen" + (f" offset:{off}" if off else "") + " sc1")
        if mid is not None:
            issue(); mid()
            a(f"s_mov_b32 {sCNT}, 0"); a(f"s_branch {label}_w")
        else:
            a(f"s_mov_b32 {sCNT}, 0")
        a(f"{label}:")
        issue()
        if mid is not None: a(f"{label}_w:")
        a("s_waitcnt vmcnt(0)")
        a(f"v_xor_b32 v{tmp}, {sTAG}, v{tags[0]}")
        for r in tags[1:]: a(f"v_bitop3_b32 v{tmp}, v{r}, {sTAG}, v{tmp} bitop3:0xbe")
        a(f"v_cmp_ne_u32 vcc, 0, v{tmp}")
        a(f"s_add_u32 {sCNT}, {sCNT}, 1")
        a("s_and_b64 exec, exec, vcc")
        a(f"s_cbranch_scc0 {label}_ok")
        if local:
            if lazy is not None: lazy(label)
            a(f"s_cmp_ge_u32 {sCNT}, {TSW}"); a(f"s_cselect_b32 s34, {sGD}, 0"); a(f"s_xor_b32 {sPATH}, {sPATH}, s34")
        if slp: a(f"s_sleep {slp}")
        a(f"s_cmp_lt_u32 {sCNT}, {SPIN}"); a(f"s_cbranch_scc1 {label}")
        a(f"s_branch L_fail{code}")
        a(f"{label}_ok:")
        a("s_mov_b64 exec, -1")
        if local: a(f"s_mov_b32 {sPATH}, 0")
        if stamps and code in (2,4,5,3): a(f"s_mov_b32 s{ {2:96,4:97,3:97,5:98}[code] }, {sCNT}")
    def arrive(off,t0):
        a("s_mov_b64 exec, 1"); a(f"v_mov_b32 v{t0}, {off}"); a(f"v_mov_b32 v{t0+1}, 1"); a(f"ds_add_u32 v{t0}, v{t0+1}"); a("s_mov_b64 exec, -1")
    nw=[0]
    def wait_flag(off, n, t0, slp=0, code=1):
        fails.add(code); nw[0]+=1; label=f"L_w{nw[0]}"
        a(f"s_mov_b32 {sCNT}, 0"); a(f"v_mov_b32 v{t0}, {off}")
        a(f"{label}:")
        a(f"ds_read_b32 v{t0+1}, v{t0}"); a("s_waitcnt lgkmcnt(0)")
        a(f"v_readfirstlane_b32 s34, v{t0+1}")
        a(f"s_add_u32 {sCNT}, {sCNT}, 1"); a(f"s_cmp_ge_u32 {sCNT}, {SPIN*16}"); a(f"s_cbranch_scc1 L_fail{code}")
        a(f"s_cmp_ge_u32 s34, {n}"); a(f"s_cbranch_scc1 {label}_ok")
        if slp: a(f"s_sleep {slp}")
        a(f"s_branch {label}")
        a(f"{label}_ok:")
    def perms(i,buf,src):
        sel="s53" if (i&1)==0 else "s54"
        for jj in range(4):
            a(f"v_perm_b32 v{buf+jj}, v{src+(2*jj+1)*4+(i>>1)}, v{src+(2*jj)*4+(i>>1)}, {sel}")
    C_SCALE=hx(f2u(128**-0.5*1.4426950408889634))
    a("s_cmp_ge_u32 s2, 256"); a("s_cbranch_scc1 L_end")
    if opt.get("perm")==1:
        a("s_and_b32 s3, s2, 7"); a("s_lshl_b32 s3, s3, 5"); a("s_lshr_b32 s2, s2, 3"); a("s_or_b32 s2, s2, s3")
    elif opt.get("perm")==2:
        a("s_cmp_lt_u32 s2, 16"); a("s_cselect_b32 s3, 1, 0"); a("s_xor_b32 s2, s2, s3")
    if stamps:
        for k in range(1,13): a(f"s_mov_b32 s{70+2*k}, 0")
        a("s_mov_b32 s96, 0"); a("s_mov_b32 s97, 0"); a("s_mov_b32 s98, 0")
    stamp(0)
    if opt.get("dbgtime") or opt.get("lite"): a("s_memrealtime s[98:99]")
    if opt.get("cpf",0): a("s_getpc_b64 s[64:65]"); a("L_pc0:")
    a("s_load_dwordx16 s[4:19], s[0:1], 0")
    a("s_load_dwordx8 s[20:27], s[0:1], 64")
    a("v_lshrrev_b32 v2, 6, v0")
    a("v_and_b32 v1, 63, v0")
    a(f"s_and_b32 {sX}, s2, 7"); a(f"s_lshr_b32 {sI}, s2, 3")
    a("v_readfirstlane_b32 s28, v2")
    if opt.get("cpf",0):
        NL=opt.get("cpfn",3)
        a(f"s_cmp_eq_u32 s28, 3"); a("s_cbranch_scc0 L_nocpf")
        a(f"s_mul_i32 s34, {sI}, {NL*128}")
        a("v_lshlrev_b32 v3, 4, v1"); a("v_add_u32 v3, s34, v3")
        a("s_mov_b32 s35, L_end-L_pc0-12")
        a(f"v_cmp_gt_u32 vcc, {NL*8}, v1"); a("s_and_saveexec_b64 s[66:67], vcc")
        a("v_cmp_gt_u32 vcc, s35, v3"); a("s_and_b64 exec, exec, vcc")
        a("s_cbranch_execz L_cpf_skip")
        a("v_mov_b32 v9, s65"); a("v_add_co_u32 v8, vcc, s64, v3"); a("s_nop 1"); a("v_addc_co_u32 v9, vcc, 0, v9, vcc")
        a("global_load_dwordx4 v[160:163], v[8:9], off")
        a("L_cpf_skip:"); a("s_mov_b64 exec, -1"); a("L_nocpf:")
    a(f"s_mov_b32 {sGD}, {GD}"); a(f"s_mov_b32 {sPATH}, 0")
    a(f"s_and_b32 {sW}, s28, 3")
    a("v_lshrrev_b32 v4, 4, v1")
    a("v_and_b32 v5, 15, v1")
    a("s_cmp_lt_u32 s28, 4"); a("s_cbranch_scc1 L_roleB")
    a("; ---------------- role A")
    if opt.get("lite") and opt.get("loc")==2:
        a("s_waitcnt lgkmcnt(0)"); a("v_writelane_b32 v165, s98, 0")
    a(f"v_mov_b32 v2, {FL}"); a("v_mov_b32 v8, 0"); a("v_mov_b32 v9, 0"); a("v_mov_b32 v10, 0"); a("v_mov_b32 v11, 0")
    a("ds_write_b128 v2, v[8:11]"); a("ds_write_b128 v2, v[8:11] offset:16"); a("ds_write_b128 v2, v[8:11] offset:32")
    a(f"s_lshr_b32 s56, {sI}, 3")
    a(f"s_and_b32 s34, {sI}, 7"); a("s_lshl_b32 s34, s34, 7"); a(f"s_lshl_b32 s57, {sX}, 10"); a("s_add_u32 s57, s57, s34")
    a("v_lshrrev_b32 v6, 3, v1"); a("v_and_b32 v7, 7, v1"); a("v_lshlrev_b32 v9, 1, v4"); a("v_xor_b32 v7, v7, v9")
    a("v_lshlrev_b32 v3, 4, v7"); a("v_lshl_add_u32 v8, v6, 13, v3"); a("v_add_u32 v8, s57, v8")
    a("s_lshl_b32 s48, s56, 7"); a(f"s_lshl_b32 s34, {sW}, 5"); a("s_add_u32 s49, s48, s34")
    a("s_lshl_b32 s48, s49, 13")
    a(f"s_lshl_b32 s50, {sW}, 12")
    a("v_lshlrev_b32 v10, 4, v1"); a(f"s_lshl_b32 s34, {sW}, 10"); a("v_add_u32 v10, s34, v10")
    a("s_waitcnt lgkmcnt(0)")
    srd(40,4,4096); srd(44,10,4194304)
    a("buffer_load_dwordx4 v[16:19], v10, s[40:43], 0 offen")
    for k in range(4):
        a(f"s_add_u32 m0, s50, {WQ+k*1024}")
        if k: a("s_add_u32 s48, s48, 65536")
        else: a("s_nop 0")
        a(f"buffer_load_dwordx4 v8, s[44:47], s48 offen {NT} lds")
    a(f"s_load_dword {sEP}, s[26:27], 0")
    srd(36,26,1<<28)
    stamp(1)
    a("s_barrier")
    a("s_branch L_A_main")
    a("L_roleB:")
    a("; ---------------- role B")
    a("s_mov_b32 s52, 4096"); a("s_mov_b32 s53, 0x05040100"); a("s_mov_b32 s54, 0x07060302")
    a(f"s_lshr_b32 s34, {sI}, 3"); a(f"s_and_b32 s56, {sI}, 7")
    a(f"s_lshl_b32 s35, s34, 3"); a(f"s_add_u32 s35, s35, {sX}"); a("s_lshl_b32 s35, s35, 20")
    a("s_lshl_b32 s57, s56, 15"); a("s_add_u32 s35, s35, s57"); a(f"s_lshl_b32 s57, {sW}, 13"); a("s_add_u32 s35, s35, s57")
    a(f"s_add_u32 s35, s35, {3072*256}")
    a("v_lshlrev_b32 v6, 8, v5"); a("v_lshl_add_u32 v6, v4, 4, v6"); a("v_add_u32 v6, s35, v6")
    a("v_lshlrev_b32 v7, 4, v5"); a("v_lshl_add_u32 v7, v4, 10, v7"); a("v_add_u32 v7, s35, v7")
    a("v_lshlrev_b32 v15, 3, v1")
    a(f"s_lshl_b32 s57, {sX}, 2"); a(f"s_add_u32 s57, s57, {sW}"); a("s_lshl_b32 s57, s57, 5"); a(f"s_add_u32 s57, s57, {sI}")
    a("s_lshl_b32 s58, s57, 9"); a(f"s_add_u32 s58, s58, {OOFF}"); a("v_add_u32 v13, s58, v15")
    a("s_lshl_b32 s58, s57, 3"); a(f"s_add_u32 s58, s58, {ZOFF}"); a("v_mov_b32 v14, s58")
    a("s_waitcnt lgkmcnt(0)")
    srd(40,6,33554432); srd(44,8,33554432); srd(36,26,1<<28)
    a(f"s_load_dword {sEP}, s[26:27], 0")
    if PRED:
        a("v_mov_b32 v8, 0"); a("v_mov_b32 v9, 0")
        a("buffer_store_dwordx2 v[8:9], v13, s[36:39], 0 offen")
        a("s_mov_b64 exec, 1"); a("buffer_store_dwordx2 v[8:9], v14, s[36:39], 0 offen"); a("s_mov_b64 exec, -1")
    if opt.get("xdirty"):
        a("s_lshl_b32 s57, s2, 14"); a(f"s_lshl_b32 s58, {sW}, 12"); a("s_add_u32 s57, s57, s58"); a("s_add_u32 s57, s57, 0x800000")
        a("v_lshlrev_b32 v20, 4, v1"); a("v_add_u32 v20, s57, v20")
        for k in range(4): a(f"v_mov_b32 v{24+k}, 0")
        for k in range(opt["xdirty"]): a(f"buffer_store_dwordx4 v[24:27], v20, s[36:39], 0 offen offset:{1024*k} {opt.get('xflag','')}")
    stamp(1)
    a("s_barrier")
    KR=16; VR=48; QR=80; S0=96; S1=100; PB=104; DR=128; DL=160; ONE=120; PO=116
    THR=opt.get("thr",5); POLLAT=opt.get("pollat",6); nld=[0]
    LOCK=opt.get("loc",0)
    def thr():
        if LOCK and nld[0]==min(THR,opt.get("thrk",THR)):
            a(f"s_cmp_eq_u32 {sW}, 3"); a("s_cbranch_scc0 L_B_noloc")
            a("s_waitcnt lgkmcnt(0)"); tagcalc()
            a("s_getreg_b32 s57, hwreg(HW_REG_XCC_ID)")
            a(f"s_lshl_b32 s58, {sX}, 8"); a(f"s_lshl_b32 s59, {sI}, 3"); a("s_add_u32 s58, s58, s59"); a(f"s_add_u32 s58, s58, {LOCOFF}")
            if LOCK==2:
                a(f"s_lshl_b32 s58, {sX}, 7"); a(f"s_lshl_b32 s59, {sI}, 2"); a("s_add_u32 s58, s58, s59"); a(f"s_add_u32 s58, s58, {LOCOFF}")
                a("s_add_u32 s57, s57, 1"); a("s_mul_i32 s57, s57, 0x01000193"); a(f"s_xor_b32 s57, s57, {sTAG}")
                a("v_mov_b32 v10, s57"); a("v_mov_b32 v12, s58")
                a("s_mov_b64 exec, 1"); a("buffer_store_dword v10, v12, s[36:39], 0 offen sc1"); a("s_mov_b64 exec, -1")
            else:
                a("v_mov_b32 v10, s57"); a(f"v_mov_b32 v11, {sTAG}"); a("v_mov_b32 v12, s58")
                a("s_mov_b64 exec, 1"); a("buffer_store_dwordx2 v[10:11], v12, s[36:39], 0 offen sc1"); a("s_mov_b64 exec, -1")
            a("L_B_noloc:")
        T_=opt.get("thrk",THR) if nld[0]<opt.get("thrsw",8) else THR
        if T_ and nld[0]>=T_: a(f"s_waitcnt vmcnt({T_-1})")
        if POLLAT and not opt.get("qd1") and not opt.get("qslp") and nld[0]==POLLAT: arrive(F_P,166)
        nld[0]+=1
    for tt in range(2):
        for t in range(4):
            r=KR+(tt*4+t)*4; thr()
            a(f"buffer_load_dwordx4 v[{r}:{r+3}], v6, s[40:43], {'s52' if tt else '0'} offen offset:{t*64} {NT}")
    for j in range(8):
        r=VR+j*4; thr()
        a(f"buffer_load_dwordx4 v[{r}:{r+3}], v7, s[44:47], {'s52' if j>=4 else '0'} offen offset:{(j&3)*256} {NT}")
    arrive(F_B,166)
    stamp(2)
    a("v_and_b32 v6, 3, v1")
    a("v_mul_u32_u24 v7, 320, v6"); a("v_lshl_add_u32 v7, v4, 4, v7"); a(f"v_add_u32 v7, {QL}, v7")
    a(f"s_mul_i32 s57, {sW}, 2112"); a(f"s_add_u32 s57, s57, {OL}")
    a("v_mul_u32_u24 v8, 528, v6"); a("v_lshl_add_u32 v8, v4, 7, v8"); a("v_add_u32 v8, s57, v8")
    a(f"s_lshl_b32 s57, {sW}, 5"); a(f"s_add_u32 s57, s57, {ML}")
    a("v_lshlrev_b32 v9, 3, v6"); a("v_add_u32 v9, s57, v9")
    a(f"s_mul_i32 s57, {sW}, 528"); a(f"s_add_u32 s57, s57, {OL}")
    a("v_add_u32 v164, s57, v15")
    a(f"s_lshl_b32 s57, {sW}, 3"); a(f"s_add_u32 s57, s57, {ML}"); a("v_mov_b32 v12, s57")
    for k in range(4): a(f"v_mov_b32 v{ONE+k}, 0x3f803f80")
    a(f"s_mov_b32 s55, {C_SCALE}")
    wait_flag(F_Q,4,166,slp=1,code=8)
    stamp(3)
    for t in range(4): a(f"ds_read_b128 v[{QR+4*t}:{QR+4*t+3}], v7 offset:{t*64}")
    if LOCK: a(f"v_mov_b32 v10, {F_LOC}"); a("ds_read_b32 v11, v10")
    a("s_waitcnt lgkmcnt(0)")
    tagcalc()
    if LOCK:
        a("v_readfirstlane_b32 s57, v11"); a("s_cmp_eq_u32 s57, 1"); a(f"s_cselect_b32 s63, 0x20000000, {sGD}")
    else: a(f"s_mov_b32 s63, {sGD}")
    a("s_waitcnt vmcnt(8)")
    stamp(4)
    for t in range(4):
        for tt in range(2):
            S=S0 if tt==0 else S1; r=KR+(tt*4+t)*4
            c = "0" if t==0 else f"v[{S}:{S+3}]"
            a(f"v_mfma_f32_16x16x32_bf16 v[{S}:{S+3}], v[{r}:{r+3}], v[{QR+4*t}:{QR+4*t+3}], {c}")
    a("s_nop 7")
    a(f"v_max3_f32 v16, v{S0}, v{S0+1}, v{S0+2}")
    a(f"v_max3_f32 v17, v{S0+3}, v{S1}, v{S1+1}")
    a(f"v_max3_f32 v16, v16, v{S1+2}, v{S1+3}")
    a("v_max_f32 v16, v16, v17")
    a("v_mov_b32 v17, v16"); a("s_nop 1"); a("v_permlane16_swap_b32 v16, v17"); a("v_max_f32 v16, v16, v17")
    a("v_mov_b32 v17, v16"); a("s_nop 1"); a("v_permlane32_swap_b32 v16, v17"); a("v_max_f32 v16, v16, v17")
    a("v_mul_f32 v18, s55, v16")
    for k in range(8): a(f"v_fma_f32 v{20+k}, v{S0+k}, s55, -v18")
    for k in range(8): a(f"v_exp_f32 v{20+k}, v{20+k}")
    a("s_nop 0")
    for k in range(4): a(f"v_cvt_pk_bf16_f32 v{PO+k}, v{20+2*k}, v{21+2*k}")
    a("s_nop 1")
    a(f"v_mfma_f32_16x16x32_bf16 v[{DL}:{DL+3}], v[{ONE}:{ONE+3}], v[{PO}:{PO+3}], 0")
    a("s_waitcnt vmcnt(0)")
    stamp(5)
    bufs=[PB,PB+4,PB+8]
    perms(0,bufs[0],VR)
    for i in range(8):
        if i+1<8: perms(i+1,bufs[(i+1)%3],VR)
        else: a("s_nop 1")
        b=bufs[i%3]
        a(f"v_mfma_f32_16x16x32_bf16 v[{DR+4*i}:{DR+4*i+3}], v[{b}:{b+3}], v[{PO}:{PO+3}], 0")
    a(f"v_mov_b32 v17, v{DL}")
    a("s_mov_b32 exec_lo, 0x000f000f"); a("s_mov_b32 exec_hi, 0x000f000f")
    a("ds_write_b64 v9, v[16:17]")
    for i in range(7): a(f"ds_write_b128 v8, v[{DR+4*i}:{DR+4*i+3}] offset:{16*i}")
    a("s_nop 3")
    a(f"ds_write_b128 v8, v[{DR+28}:{DR+31}] offset:{16*7}")
    arrive(F_B1,10)
    wait_flag(F_B1,4,10,code=6)
    stamp(6)
    a("ds_read2_b64 v[20:23], v12 offset0:0 offset1:4")
    a("ds_read2_b64 v[24:27], v12 offset0:8 offset1:12")
    for w in range(4): a(f"ds_read_b64 v[{32+2*w}:{33+2*w}], v164 offset:{2112*w}")
    wl(4)
    a("v_max3_f32 v28, v20, v22, v24"); a("v_max_f32 v28, v28, v26")
    a("v_mul_f32 v29, s55, v28")
    for w in range(4): a(f"v_fma_f32 v{40+w}, v{20+2*w}, s55, -v29")
    for w in range(4): a(f"v_exp_f32 v{40+w}, v{40+w}")
    a("s_nop 0")
    a("v_mul_f32 v30, v40, v21")
    for w in range(1,4): a(f"v_fmac_f32 v30, v{40+w}, v{21+2*w}")
    a("v_rcp_f32 v31, v30"); a("v_log_f32 v44, v30")
    a("s_waitcnt lgkmcnt(0)")
    a("v_mul_f32 v46, v40, v32"); a("v_mul_f32 v47, v40, v33")
    for w in range(1,4):
        a(f"v_fmac_f32 v46, v{40+w}, v{32+2*w}"); a(f"v_fmac_f32 v47, v{40+w}, v{33+2*w}")
    a("v_mul_f32 v46, v46, v31"); a("v_mul_f32 v47, v47, v31")
    a("v_add_f32 v44, v44, v29")
    a(f"v_mov_b32 v49, {sTAG}"); a(f"v_mov_b32 v45, {sTAG}")
    a("v_cvt_pk_bf16_f32 v48, v46, v47")
    a("buffer_store_dwordx2 v[48:49], v13, s[36:39], 0 offen")
    a("s_mov_b64 exec, 1"); a("buffer_store_dwordx2 v[44:45], v14, s[36:39], 0 offen")
    if not opt.get("noG"): a(f"buffer_store_dwordx2 v[44:45], v14, s[36:39], s63 offen sc1")
    a("s_mov_b64 exec, -1")
    if not opt.get("noG"): a(f"buffer_store_dwordx2 v[48:49], v13, s[36:39], s63 offen sc1")
    stamp(7)
    dump_stamps(8)
    a("s_endpgm")
    a("L_A_main:")
    QPUB,GPUB,QG,QLW,TRA,XNR,XNW,TRC,OBR,HBR,DPUB,WGV,WOV,WDV,OGA,ZGA,MISC=32,33,34,38,39,40,41,42,44,45,46,48,49,51,53,54,55
    a(f"s_and_b32 s34, {sI}, 3"); a(f"s_and_b32 s35, {sX}, 1")
    a("s_lshl_b32 s58, s34, 7"); a("s_lshl_b32 s59, s35, 6"); a("s_sub_u32 s58, s58, s59"); a("s_max_i32 s58, s58, 0")
    a("s_lshr_b32 s63, s58, 6")
    a("s_mul_i32 s59, s35, 3"); a("s_add_u32 s59, s59, s34"); a("s_cmp_eq_u32 s59, 3"); a("s_cselect_b32 s59, 4, 8")
    a(f"s_mul_i32 s34, {sX}, 448"); a("s_add_u32 s58, s58, s34")
    Q16=opt.get("q16",0)
    if Q16:
        a(f"s_lshl_b32 s48, {sX}, 2"); a("s_add_u32 s48, s48, s56"); a("s_lshl_b32 s48, s48, 5")
        a(f"s_and_b32 s51, {sI}, 7"); a("s_lshl_b32 s51, s51, 2"); a("s_add_u32 s48, s48, s51"); a(f"s_add_u32 s48, s48, {sW}"); a("s_lshl_b32 s48, s48, 8")
        a(f"s_add_u32 s48, s48, {QOFF}")
        a(f"v_lshlrev_b32 v{QPUB}, 6, v4"); a(f"v_lshl_add_u32 v{QPUB}, v5, 3, v{QPUB}"); a(f"v_add_u32 v{QPUB}, s48, v{QPUB}")
        a("v_mov_b32 v28, 0x7f000000"); a("v_cmp_gt_u32 vcc, 8, v5"); a("s_nop 1"); a(f"v_cndmask_b32 v{QPUB}, v28, v{QPUB}, vcc")
    else:
        a(f"s_lshl_b32 s48, {sX}, 16"); a("s_lshl_b32 s51, s56, 12"); a("s_add_u32 s48, s48, s51")
        a(f"s_and_b32 s51, {sI}, 7"); a("s_lshl_b32 s51, s51, 9"); a("s_add_u32 s48, s48, s51"); a(f"s_lshl_b32 s51, {sW}, 7"); a("s_add_u32 s48, s48, s51")
        a(f"s_add_u32 s48, s48, {QOFF}")
        a(f"v_lshlrev_b32 v{QPUB}, 14, v4"); a(f"v_lshl_add_u32 v{QPUB}, v5, 3, v{QPUB}"); a(f"v_add_u32 v{QPUB}, s48, v{QPUB}")
    G16=opt.get("g16",0)
    if G16:
        a(f"s_lshr_b32 s35, {sW}, 1"); a("s_add_u32 s48, s35, s63"); a(f"s_lshl_b32 s51, {sX}, 3"); a("s_add_u32 s48, s48, s51"); a("s_lshl_b32 s48, s48, 3")
        a(f"s_bfe_u32 s51, {sI}, 0x10002"); a("s_lshl_b32 s51, s51, 2"); a("s_add_u32 s48, s48, s51"); a("s_add_u32 s48, s48, s56"); a("s_lshl_b32 s48, s48, 9")
        a(f"s_and_b32 s51, {sW}, 1"); a("s_lshl_b32 s51, s51, 8"); a("s_add_u32 s48, s48, s51"); a(f"s_add_u32 s48, s48, {GUOFF}")
    else:
        a(f"s_lshr_b32 s35, {sW}, 1"); a("s_add_u32 s48, s35, s63"); a(f"s_lshl_b32 s51, {sX}, 3"); a("s_add_u32 s48, s48, s51"); a("s_lshl_b32 s48, s48, 3")
        a(f"s_bfe_u32 s51, {sI}, 0x10002"); a("s_lshl_b32 s51, s51, 2"); a("s_add_u32 s48, s48, s51"); a("s_add_u32 s48, s48, s56"); a("s_lshl_b32 s48, s48, 10")
        a(f"s_and_b32 s51, {sW}, 1"); a("s_lshl_b32 s51, s51, 7"); a("s_add_u32 s48, s48, s51"); a(f"s_add_u32 s48, s48, {GUOFF}")
    a("s_cmp_eq_u32 s59, 4"); a("s_cselect_b32 s51, s35, 0"); a("s_cmp_eq_u32 s51, 0"); a("s_cselect_b32 s66, 0, 0x20000000"); a(f"s_add_u32 s67, s66, {sGD}")
    a(f"v_lshlrev_b32 v{GPUB}, {6 if G16 else 8}, v4"); a(f"v_lshl_add_u32 v{GPUB}, v5, 3, v{GPUB}"); a(f"v_add_u32 v{GPUB}, s48, v{GPUB}")
    if G16:
        a("v_mov_b32 v28, 0x5f000000"); a("v_cmp_gt_u32 vcc, 8, v5"); a("s_nop 1"); a(f"v_cndmask_b32 v{GPUB}, v28, v{GPUB}, vcc")
    if PRED:
        a("v_mov_b32 v20, 0"); a("v_mov_b32 v21, 0")
        a(f"buffer_store_dwordx2 v[20:21], v{QPUB}, s[36:39], 0 offen")
        a(f"buffer_store_dwordx2 v[20:21], v{GPUB}, s[36:39], s66 offen")
    NPD=2 if PRED else 0
    a("v_lshrrev_b32 v24, 2, v5"); a("v_and_b32 v25, 3, v5"); a("v_lshl_add_u32 v26, v4, 2, v24")
    a("v_bfe_u32 v27, v26, 1, 2"); a(f"v_xor_b32 v27, {sW}, v27"); a("v_lshlrev_b32 v27, 5, v27")
    a(f"v_lshlrev_b32 v{TRA}, 7, v26"); a(f"v_add_u32 v{TRA}, v{TRA}, v27"); a(f"v_lshl_add_u32 v{TRA}, v25, 3, v{TRA}")
    a(f"v_mul_u32_u24 v{XNR}, 320, v25"); a(f"v_lshl_add_u32 v{XNR}, v4, 4, v{XNR}"); a(f"v_add_u32 v{XNR}, {XN}, v{XNR}")
    a("v_bfe_u32 v28, v1, 2, 2"); a(f"v_lshlrev_b32 v{XNW}, 6, v28"); a("v_and_b32 v28, 1, v1"); a(f"v_lshl_add_u32 v{XNW}, v28, 5, v{XNW}")
    a("v_bfe_u32 v28, v1, 1, 1"); a(f"v_lshl_add_u32 v{XNW}, v28, 3, v{XNW}"); a(f"s_mul_i32 s34, {sW}, 320"); a(f"s_add_u32 s34, s34, {XN}"); a(f"v_add_u32 v{XNW}, s34, v{XNW}")
    a("s_mov_b32 s40, 0xffff0000"); a("s_mov_b32 s41, 0"); a("s_mov_b32 s42, 0"); a("s_mov_b32 s43, 0x0000ffff"); a("s_mov_b32 s44, 0"); a("s_mov_b32 s45, 0xffff0000")
    a("s_mov_b32 s48, 0x3f803f80")
    a(f"s_waitcnt vmcnt({4+NPD})")
    stamp(2)
    a("v_mov_b32 v20, 0"); a("v_mov_b32 v21, 0")
    for k in range(4):
        a(f"v_dot2_f32_bf16 v20, v{16+k}, s48, v20"); a(f"v_dot2_f32_bf16 v21, v{16+k}, v{16+k}, v21")
    a("s_nop 2")
    for ror in (1,2,4,8):
        a(f"v_add_f32_dpp v20, v20, v20 row_ror:{ror} row_mask:0xf bank_mask:0xf")
        a(f"v_add_f32_dpp v21, v21, v21 row_ror:{ror} row_mask:0xf bank_mask:0xf"); a("s_nop 0")
    for sw in ("v_permlane16_swap_b32","v_permlane32_swap_b32"):
        a("v_mov_b32 v22, v20"); a("v_mov_b32 v23, v21"); a("s_nop 0")
        a(f"{sw} v20, v22"); a(f"{sw} v21, v23")
        a("v_add_f32 v20, v20, v22"); a("v_add_f32 v21, v21, v23")
    inv=hx(f2u(1.0/512))
    a(f"v_mul_f32 v20, {inv}, v20"); a(f"v_mul_f32 v21, {inv}, v21")
    a("v_fma_f32 v21, -v20, v20, v21"); a("v_max_f32 v21, 0, v21"); a(f"v_add_f32 v21, {hx(f2u(1e-5))}, v21")
    a("v_rsq_f32 v21, v21"); a("s_nop 0"); a("v_mul_f32 v20, v20, v21")
    XO=56; DA=72; TR=76
    for k in range(4):
        a(f"v_lshlrev_b32 v{XO+2*k}, 16, v{16+k}"); a(f"v_and_b32 v{XO+1+2*k}, 0xffff0000, v{16+k}")
    for k in range(8): a(f"v_fma_f32 v{XO+k}, v{XO+k}, v21, -v20")
    for k in range(4): a(f"v_cvt_pk_bf16_f32 v{16+k}, v{XO+2*k}, v{XO+1+2*k}")
    a("s_lshl_b32 s48, s56, 4"); a("s_lshl_b64 exec, 0xffff, s48")
    a(f"ds_write2_b64 v{XNW}, v[16:17], v[18:19] offset0:0 offset1:2")
    a("s_mov_b64 exec, -1")
    XSPL=opt.get("xspl",0)
    arrive(F_X if XSPL else F_A,20)
    a("v_lshlrev_b32 v30, 4, v1")
    if Q16:
        a(f"s_lshl_b32 s34, {sX}, 7"); a(f"s_lshl_b32 s35, {sW}, 3"); a("s_add_u32 s34, s34, s35"); a("s_lshl_b32 s34, s34, 8")
        a(f"s_lshr_b32 s35, {sI}, 3"); a("s_lshl_b32 s35, s35, 6"); a("s_add_u32 s34, s34, s35"); a(f"s_add_u32 s34, s34, {QOFF}")
        a("v_lshrrev_b32 v28, 5, v1"); a(f"v_lshlrev_b32 v{QG}, 13, v28"); a("v_bfe_u32 v28, v1, 2, 3"); a(f"v_lshl_add_u32 v{QG}, v28, 8, v{QG}")
        a("v_and_b32 v29, 3, v1"); a(f"v_lshl_add_u32 v{QG}, v29, 4, v{QG}"); a(f"v_add_u32 v{QG}, s34, v{QG}"); a(f"v_add_u32 v{QG+1}, 0x4000, v{QG}")
        a(f"s_mul_i32 s35, {sW}, 320"); a(f"s_add_u32 s35, s35, {QL}"); a(f"v_lshlrev_b32 v{QLW}, 5, v28"); a(f"v_lshl_add_u32 v{QLW}, v29, 2, v{QLW}"); a(f"v_add_u32 v{QLW}, s35, v{QLW}")
    else:
        a(f"s_lshr_b32 s35, {sI}, 3"); a(f"s_lshl_b32 s34, {sX}, 2"); a("s_add_u32 s34, s34, s35"); a("s_lshl_b32 s34, s34, 14")
        a(f"s_lshl_b32 s35, {sW}, 10"); a("s_add_u32 s34, s34, s35"); a(f"s_add_u32 s34, s34, {QOFF}")
        a(f"v_add_u32 v{QG}, s34, v30")
        for k in range(1,4): a(f"v_add_u32 v{QG+k}, {4096*k}, v{QG}")
        a(f"s_mul_i32 s35, {sW}, 320"); a(f"s_add_u32 s35, s35, {QL}"); a(f"v_lshlrev_b32 v{QLW}, 2, v1"); a(f"v_add_u32 v{QLW}, s35, v{QLW}")
    a("v_lshrrev_b32 v28, 3, v1"); a("v_and_b32 v29, 7, v1"); a("v_lshlrev_b32 v31, 1, v4"); a("v_xor_b32 v29, v29, v31")
    a("v_cmp_gt_u32 vcc, s59, v29")
    a(f"v_lshlrev_b32 v29, 4, v29"); a(f"v_mul_u32_u24 v{WGV}, 3584, v28"); a(f"v_add_u32 v{WGV}, v{WGV}, v29"); a(f"v_add_u32 v{WGV}, s58, v{WGV}")
    a("v_mov_b32 v28, 0x7f000000"); a(f"v_cndmask_b32 v{WGV}, v28, v{WGV}, vcc")
    a(f"s_and_b32 s34, {sI}, 3"); a("s_lshl_b32 s34, s34, 8")
    a("v_xor_b32 v29, v5, v31"); a("v_lshlrev_b32 v29, 4, v29"); a("v_add_u32 v29, s34, v29")
    a(f"v_lshl_add_u32 v{WOV}, v4, 13, v29"); a(f"v_xor_b32 v{WOV+1}, 128, v{WOV}")
    a(f"v_lshl_add_u32 v{WDV}, v4, 10, v29"); a(f"v_xor_b32 v{WDV+1}, 128, v{WDV}")
    a("v_and_b32 v28, 7, v26"); a("v_lshlrev_b32 v28, 5, v28"); a("v_lshl_add_u32 v28, v25, 3, v28"); a("v_lshl_add_u32 v28, v26, 8, v28")
    a(f"s_lshl_b32 s34, {sW}, 6"); a(f"v_xor_b32 v{TRC}, s34, v28"); a(f"v_add_u32 v{TRC}, {WC}, v{TRC}"); a(f"v_xor_b32 v{TRC+1}, 32, v{TRC}")
    a(f"v_mul_u32_u24 v{OBR}, 192, v25"); a(f"v_lshl_add_u32 v{OBR}, v4, 4, v{OBR}"); a(f"v_add_u32 v{OBR}, {OB}, v{OBR}")
    a(f"v_lshlrev_b32 v{HBR}, 6, v25"); a(f"v_lshl_add_u32 v{HBR}, v4, 4, v{HBR}"); a(f"v_add_u32 v{HBR}, {HB}, v{HBR}")
    D16=opt.get("d16",0)
    if D16:
        a(f"s_and_b32 s34, {sI}, 3"); a("s_lshl_b32 s34, s34, 5"); a(f"s_lshl_b32 s35, {sW}, 1"); a("s_add_u32 s34, s34, s35"); a("s_lshl_b32 s34, s34, 12")
        a(f"s_lshl_b32 s35, {sX}, 3"); a(f"s_lshr_b32 s48, {sI}, 2"); a("s_add_u32 s35, s35, s48"); a("s_lshl_b32 s35, s35, 6"); a("s_add_u32 s34, s34, s35"); a(f"s_add_u32 s34, s34, {DOFF}")
        a(f"v_lshlrev_b32 v{DPUB}, 15, v4"); a("v_lshrrev_b32 v28, 3, v5"); a(f"v_lshl_add_u32 v{DPUB}, v28, 12, v{DPUB}"); a("v_and_b32 v28, 7, v5"); a(f"v_lshl_add_u32 v{DPUB}, v28, 3, v{DPUB}")
        a(f"v_add_u32 v{DPUB}, s34, v{DPUB}")
    else:
        a(f"s_and_b32 s34, {sI}, 3"); a("s_lshl_b32 s34, s34, 6"); a(f"s_lshl_b32 s35, {sW}, 2"); a("s_add_u32 s34, s34, s35"); a("s_lshl_b32 s34, s34, 12")
        a(f"s_lshl_b32 s35, {sX}, 3"); a(f"s_lshr_b32 s48, {sI}, 2"); a("s_add_u32 s35, s35, s48"); a("s_lshl_b32 s35, s35, 6"); a("s_add_u32 s34, s34, s35"); a(f"s_add_u32 s34, s34, {DOFF}")
        a(f"v_lshlrev_b32 v{DPUB}, 16, v4"); a("v_lshrrev_b32 v28, 3, v5"); a(f"v_lshl_add_u32 v{DPUB}, v28, 12, v{DPUB}"); a("v_and_b32 v28, 7, v5"); a(f"v_lshl_add_u32 v{DPUB}, v28, 3, v{DPUB}")
        a(f"v_add_u32 v{DPUB}, s34, v{DPUB}"); a(f"v_add_u32 v{DPUB+1}, 0x2000, v{DPUB}")
    a(f"s_lshr_b32 s57, {sI}, 2")
    a("s_lshl_b32 s48, s56, 7"); a(f"s_lshl_b32 s34, {sW}, 5"); a("s_add_u32 s48, s48, s34"); a("s_mul_i32 s48, s48, 3584")
    a(f"s_lshl_b32 s49, {sX}, 9"); a("s_lshl_b32 s34, s57, 6"); a("s_add_u32 s49, s49, s34")
    a(f"s_lshr_b32 s34, {sW}, 1"); a("s_lshl_b32 s34, s34, 5"); a("s_add_u32 s49, s49, s34"); a(f"s_and_b32 s34, {sW}, 1"); a("s_lshl_b32 s34, s34, 2"); a("s_add_u32 s49, s49, s34"); a("s_lshl_b32 s49, s49, 10")
    a(f"s_mul_i32 s51, {sX}, 224"); a("s_lshl_b32 s34, s57, 5"); a("s_add_u32 s51, s51, s34"); a(f"s_lshl_b32 s34, {sW}, 3"); a("s_add_u32 s51, s51, s34"); a("s_lshl_b32 s51, s51, 10")
    a("s_cmp_ge_u32 s57, 7"); a("s_cselect_b32 s51, 0x7f000000, s51")
    def project(base):
        for ks in range(4):
            r=TR+4*ks
            a(f"ds_read_b64_tr_b16 v[{r}:{r+1}], v{TRA} offset:{base+ks*4096}"); a(f"ds_read_b64_tr_b16 v[{r+2}:{r+3}], v{TRA} offset:{base+ks*4096+2048}")
        for ks in range(4):
            r=TR+4*ks; c="0" if ks==0 else f"v[{DA}:{DA+3}]"
            wl(6-2*ks)
            a(f"v_mfma_f32_16x16x32_bf16 v[{DA}:{DA+3}], v[{XO+4*ks}:{XO+4*ks+3}], v[{r}:{r+3}], {c}")
        a(f"v_mov_b32 v21, {sTAG}")
        a("s_nop 6")
        a(f"v_cndmask_b32 v20, v{DA}, v{DA+1}, s[40:41]"); a(f"v_cndmask_b32 v20, v20, v{DA+2}, s[42:43]"); a(f"v_cndmask_b32 v20, v20, v{DA+3}, s[44:45]")
    LOCK=opt.get("loc",0)
    if XSPL:
        wait_flag(F_X,4,20,code=1)
        tagcalc()
        for ks in range(4): a(f"ds_read_b128 v[{XO+4*ks}:{XO+4*ks+3}], v{XNR} offset:{64*ks}")
        a(f"s_waitcnt vmcnt({NPD})")
        stamp(3)
        arrive(F_A,20)
        wait_flag(F_A,4,20,code=1)
    else:
        a(f"s_waitcnt vmcnt({NPD})")
        stamp(3)
        arrive(F_A,20)
        wait_flag(F_A,8,20,code=1)
        tagcalc()
        for ks in range(4): a(f"ds_read_b128 v[{XO+4*ks}:{XO+4*ks+3}], v{XNR} offset:{64*ks}")
        a("s_waitcnt lgkmcnt(0)")
    project(WQ)
    if Q16:
        a("s_nop 1"); a("v_mov_b32_dpp v22, v20 row_ror:8 row_mask:0xf bank_mask:0xf"); a("v_cvt_pk_bf16_f32 v20, v20, v22")
    a(f"buffer_store_dwordx2 v[20:21], v{QPUB}, s[36:39], 0 offen")
    if LOCK==2:
        if opt.get("locslp"): a(f"s_sleep {opt['locslp']}")
        a(f"s_lshl_b32 s34, {sX}, 7"); a(f"s_add_u32 s34, s34, {LOCOFF}"); a("s_add_u32 s34, s26, s34"); a("s_addc_u32 s35, s27, 0")
        a("s_load_dwordx16 s[68:83], s[34:35], 0"); a("s_load_dwordx16 s[84:99], s[34:35], 64")
        a("s_waitcnt lgkmcnt(0)")
        a("s_getreg_b32 s34, hwreg(HW_REG_XCC_ID)"); a("s_add_u32 s34, s34, 1"); a("s_mul_i32 s34, s34, 0x01000193"); a(f"s_xor_b32 s34, s34, {sTAG}")
        a("s_xor_b32 s35, s68, s34")
        for k in range(69,100): a(f"s_xor_b32 s{k}, s{k}, s34"); a(f"s_or_b32 s35, s35, s{k}")
        a("s_cmp_eq_u32 s35, 0"); a(f"s_cselect_b32 s55, 0x20000000, {sGD}")
        a(f"s_cmp_eq_u32 {sW}, 3"); a("s_cbranch_scc0 L_A_locw")
        a(f"s_cmp_eq_u32 s55, {sGD}"); a("s_cselect_b32 s34, 0, 1"); a(f"v_mov_b32 v28, {F_LOC}"); a("v_mov_b32 v29, s34"); a("ds_write_b32 v28, v29")
        a("L_A_locw:")
    LAZY=opt.get("lazyq",0)
    if LAZY: a("v_mov_b32 v18, v20"); a("v_mov_b32 v19, v21")
    elif not opt.get("noG"): a(f"buffer_store_dwordx2 v[20:21], v{QPUB}, s[36:39], {'s55' if LOCK==2 else sGD} offen sc1")
    stamp(4)
    NQ=2 if Q16 else 4
    QLD=[("buffer_load_dwordx4",f"v[{TR+4*k}:{TR+4*k+3}]",f"v{QG+k}",0) for k in range(NQ)]
    QTG=[TR+1+2*k for k in range(2*NQ)]
    EARLY=opt.get("early",1)
    def q_epilogue():
        if Q16:
            U=TR+8
            for k in range(4):
                a(f"v_lshlrev_b32 v{U+2*k}, 16, v{TR+2*k}"); a(f"v_and_b32 v{U+1+2*k}, 0xffff0000, v{TR+2*k}")
            a(f"v_pk_add_f32 v[{U}:{U+1}], v[{U}:{U+1}], v[{U+4}:{U+5}]"); a(f"v_pk_add_f32 v[{U+2}:{U+3}], v[{U+2}:{U+3}], v[{U+6}:{U+7}]")
            for k in range(4): a(f"v_mov_b32 v{U+4+k}, v{U+k}")
            for k in range(4): a(f"v_permlane32_swap_b32 v{U+k}, v{U+4+k}")
            for k in range(4): a(f"v_add_f32 v{U+k}, v{U+k}, v{U+4+k}")
            a(f"v_cvt_pk_bf16_f32 v24, v{U}, v{U+2}"); a(f"v_cvt_pk_bf16_f32 v25, v{U+1}, v{U+3}")
            a(f"ds_write_b32 v{QLW}, v24"); a(f"ds_write_b32 v{QLW}, v25 offset:16")
        else:
            for e in (0,2): a(f"v_add_f32 v{TR+e}, v{TR+e}, v{TR+4+e}"); a(f"v_add_f32 v{TR+8+e}, v{TR+8+e}, v{TR+12+e}")
            for e in (0,2): a(f"v_add_f32 v{TR+e}, v{TR+e}, v{TR+8+e}")
            a(f"v_cvt_pk_bf16_f32 v24, v{TR}, v{TR+2}")
            a(f"ds_write_b32 v{QLW}, v24")
        arrive(F_Q,20)
        stamp(5)
    QD1=opt.get("qd1",0); QD2=opt.get("qd2",0)
    if QD1:
        T2=140
        QLD2=[("buffer_load_dwordx4",f"v[{T2+4*k}:{T2+4*k+3}]",f"v{QG+k}",0) for k in range(4)]
        a(f"s_sleep {QD1}")
        for op,dst,va,off in QLD: a(f"{op} {dst}, {va}, s[36:39], {sPATH} offen sc1")
        a(f"s_sleep {QD2}")
        for op,dst,va,off in QLD2: a(f"{op} {dst}, {va}, s[36:39], {sPATH} offen sc1")
        def q_check(nafter):
            a(f"s_waitcnt vmcnt({4+nafter})")
            a(f"v_xor_b32 v24, {sTAG}, v{QTG[0]}")
            for r in QTG[1:]: a(f"v_bitop3_b32 v24, v{r}, {sTAG}, v24 bitop3:0xbe")
            a("v_cmp_ne_u32 vcc, 0, v24")
            a("s_cbranch_vccz L_q_ok1")
            a(f"s_waitcnt vmcnt({nafter})")
            for k in range(16): a(f"v_mov_b32 v{TR+k}, v{T2+k}")
            a(f"v_xor_b32 v24, {sTAG}, v{QTG[0]}")
            for r in QTG[1:]: a(f"v_bitop3_b32 v24, v{r}, {sTAG}, v24 bitop3:0xbe")
            a("v_cmp_ne_u32 vcc, 0, v24")
            a("s_cbranch_vccz L_q_ok1")
            poll("L_qpoll",2,QLD,QTG,24)
            a("L_q_ok1:")
            q_epilogue()
        QLATE=opt.get("qlate",0)
        if not QLATE: q_check(0)
        EARLY=0
    else:
        if opt.get("qslp"): a(f"s_sleep {opt['qslp']}")
        elif POLLAT: wait_flag(F_P,4,20,slp=1,code=11)
        if EARLY:
            for op,dst,va,off in QLD: a(f"{op} {dst}, {va}, s[36:39], {sPATH} offen sc1")
        else:
            def loc_issue():
                a(f"s_cmp_eq_u32 {sW}, 3"); a("s_cbranch_scc0 L_A_noloc1")
                a(f"s_lshl_b32 s34, {sX}, 8"); a(f"s_add_u32 s34, s34, {LOCOFF}"); a("v_and_b32 v28, 31, v1"); a("v_lshlrev_b32 v28, 3, v28"); a("v_add_u32 v28, s34, v28")
                a("buffer_load_dwordx2 v[92:93], v28, s[36:39], 0 offen sc1")
                a("L_A_noloc1:")
            def loc_check(lab):
                a(f"s_cmp_eq_u32 {sW}, 3"); a(f"s_cbranch_scc0 {lab}")
                a("s_getreg_b32 s34, hwreg(HW_REG_XCC_ID)")
                a(f"v_xor_b32 v28, {sTAG}, v93"); a("v_bitop3_b32 v28, v92, s34, v28 bitop3:0xbe"); a("v_cmp_ne_u32 vcc, 0, v28")
                a("s_cmp_eq_u64 vcc, 0"); a("s_cselect_b32 s34, 1, 2")
                a(f"v_mov_b32 v28, {F_LOC}"); a("v_mov_b32 v29, s34"); a("ds_write_b32 v28, v29")
                a(f"{lab}:")
            if LOCK==1 and not LAZY:
                loc_issue()
                poll("L_qpoll",2,QLD,QTG,24)
                loc_check("L_A_noloc2")
            elif LOCK==1 and LAZY:
                a("s_mov_b32 s54, 0")
                def gcopy(lab):
                    a("s_cmp_eq_u32 s54, 0"); a(f"s_cbranch_scc0 {lab}")
                    a("s_mov_b64 s[46:47], exec"); a("s_mov_b64 exec, -1")
                    a(f"buffer_store_dwordx2 v[18:19], v{QPUB}, s[36:39], {sGD} offen sc1")
                    a("s_mov_b64 exec, s[46:47]"); a("s_mov_b32 s54, 1")
                    a(f"{lab}:")
                def lazy(label):
                    a("s_mov_b64 s[46:47], exec"); a("s_mov_b64 exec, -1")
                    a(f"v_mov_b32 v28, {F_LOC}"); a("ds_read_b32 v29, v28"); a("s_waitcnt lgkmcnt(0)"); a("v_readfirstlane_b32 s34, v29")
                    a("s_mov_b64 exec, s[46:47]")
                    a("s_cmp_eq_u32 s34, 2"); a(f"s_cbranch_scc0 {label}_nz")
                    gcopy(f"{label}_gc")
                    a(f"{label}_nz:")
                loc_issue()
                for op,dst,va,off in QLD: a(f"{op} {dst}, {va}, s[36:39], 0 offen sc1")
                def q_finish(nafter):
                    a(f"s_waitcnt vmcnt({nafter})")
                    loc_check("L_A_noloc2")
                    a(f"v_xor_b32 v24, {sTAG}, v{QTG[0]}")
                    for r in QTG[1:]: a(f"v_bitop3_b32 v24, v{r}, {sTAG}, v24 bitop3:0xbe")
                    a("v_cmp_ne_u32 vcc, 0, v24")
                    a("s_cbranch_vccz L_q_ok2")
                    poll("L_qpoll",2,QLD,QTG,24,lazy=lazy)
                    a("L_q_ok2:")
                    wait_flag(F_LOC,1,28,code=14)
                    a("s_cmp_eq_u32 s34, 2"); a("s_cbranch_scc0 L_q_nog")
                    gcopy("L_q_gc2")
                    a("L_q_nog:")
                    q_epilogue()
                QL2=opt.get("ql2",0)
                if not QL2: q_finish(0)
            else:
                poll("L_qpoll",2,QLD,QTG,24)
            if not (LOCK==1 and LAZY): q_epilogue()
    a(f"s_bitcmp0_b32 {sI}, 2"); a("s_cselect_b32 s68, s16, s18"); a("s_cselect_b32 s69, s17, s19")
    wait_flag(F_B,4,20,slp=1,code=9)
    stamp(6)
    a("s_mov_b32 s4, s68"); a("s_and_b32 s5, s69, 0xffff"); a("s_mov_b32 s6, 1835008"); a("s_mov_b32 s7, 0x20000")
    for k in range(4):
        a(f"s_add_u32 m0, s50, {WG+k*1024}")
        if k: a(f"s_add_u32 s48, s48, {8*3584}")
        else: a("s_nop 0")
        a(f"buffer_load_dwordx4 v{WGV}, s[4:7], s48 offen {NT} lds")
    def issue_wc():
        srd(8,12,4194304)
        for k in range(4):
            a(f"s_add_u32 m0, s50, {WC+k*1024}")
            if k: a("s_add_u32 s49, s49, 1024")
            else: a("s_nop 0")
            a(f"buffer_load_dwordx4 v{WOV+(k&1)}, s[8:11], s49 offen {NT} lds")
        srd(16,20,1835008)
        a("s_lshr_b32 s34, s50, 1")
        for k in range(2):
            a(f"s_add_u32 m0, s34, {WC+16384+k*1024}")
            if k: a("s_add_u32 s51, s51, 4096")
            else: a("s_nop 0")
            a(f"buffer_load_dwordx4 v{WDV+k}, s[16:19], s51 offen {NT} lds")
    SPLIT=opt.get("split",0)
    if not SPLIT: issue_wc()
    if opt.get("qd1",0) and opt.get("qlate",0): q_check(4 if SPLIT else 10)
    if opt.get("ql2",0): q_finish(4 if SPLIT else 10)
    if EARLY:
        a("s_waitcnt vmcnt(10)")
        a(f"v_xor_b32 v24, {sTAG}, v{QTG[0]}")
        for r in QTG[1:]: a(f"v_bitop3_b32 v24, v{r}, {sTAG}, v24 bitop3:0xbe")
        a("v_cmp_ne_u32 vcc, 0, v24")
        a("s_cbranch_vccz L_q_ok")
        poll("L_qpoll",2,QLD,QTG,24)
        a("L_q_ok:")
        q_epilogue()
    a(f"s_cmp_eq_u32 {sW}, 2"); a("s_cbranch_scc1 L_A_adr2")
    a(f"s_cmp_eq_u32 {sW}, 3"); a("s_cbranch_scc1 L_A_adr3")
    a(f"s_lshl_b32 s34, {sX}, 2"); a("s_lshr_b32 s35, s57, 1"); a("s_add_u32 s58, s34, s35")
    a("s_lshl_b32 s34, s58, 14"); a("s_and_b32 s35, s57, 1"); a("s_lshl_b32 s35, s35, 8"); a("s_add_u32 s34, s34, s35")
    a(f"s_lshl_b32 s35, {sW}, 7"); a("s_add_u32 s34, s34, s35"); a(f"s_add_u32 s34, s34, {OOFF}")
    a("v_bfe_u32 v7, v1, 2, 2"); a("v_and_b32 v8, 3, v1")
    a(f"v_lshlrev_b32 v{OGA}, 12, v4"); a(f"v_lshl_add_u32 v{OGA}, v7, 9, v{OGA}"); a(f"v_lshl_add_u32 v{OGA}, v8, 4, v{OGA}"); a(f"v_add_u32 v{OGA}, s34, v{OGA}")
    a("s_lshl_b32 s34, s58, 8"); a(f"s_add_u32 s34, s34, {ZOFF}")
    a(f"v_lshlrev_b32 v{ZGA}, 6, v4"); a(f"v_lshl_add_u32 v{ZGA}, v7, 3, v{ZGA}"); a(f"v_add_u32 v{ZGA}, s34, v{ZGA}")
    a(f"v_mul_u32_u24 v{MISC}, 192, v4"); a(f"v_lshl_add_u32 v{MISC}, v8, 4, v{MISC}"); a(f"s_lshl_b32 s34, {sW}, 6"); a(f"s_add_u32 s34, s34, {OB}"); a(f"v_add_u32 v{MISC}, s34, v{MISC}")
    a("s_branch L_A_adrd")
    a("L_A_adr2:")
    if G16:
        a(f"s_lshl_b32 s34, {sX}, 3"); a("s_add_u32 s34, s34, s57"); a("s_lshl_b32 s34, s34, 12"); a(f"s_add_u32 s34, s34, {GUOFF}")
        a(f"v_lshlrev_b32 v{OGA}, 3, v1"); a(f"v_add_u32 v{OGA}, s34, v{OGA}"); a(f"v_mov_b32 v{ZGA}, 0")
        a("v_bfe_u32 v7, v1, 3, 2"); a(f"v_lshlrev_b32 v{MISC}, 6, v7"); a("v_bfe_u32 v7, v1, 2, 1"); a(f"v_lshl_add_u32 v{MISC}, v7, 4, v{MISC}")
        a("v_lshrrev_b32 v7, 5, v1"); a(f"v_lshl_add_u32 v{MISC}, v7, 3, v{MISC}"); a("v_and_b32 v7, 3, v1"); a(f"v_lshl_add_u32 v{MISC}, v7, 1, v{MISC}"); a(f"v_add_u32 v{MISC}, {HB}, v{MISC}")
    else:
        a(f"s_lshl_b32 s34, {sX}, 3"); a("s_add_u32 s34, s34, s57"); a("s_lshl_b32 s34, s34, 13"); a(f"s_add_u32 s34, s34, {GUOFF}")
        a(f"v_add_u32 v{OGA}, s34, v30"); a(f"v_add_u32 v{ZGA}, 4096, v{OGA}")
        a("v_bfe_u32 v7, v5, 1, 2"); a(f"v_lshlrev_b32 v{MISC}, 6, v4"); a(f"v_lshl_add_u32 v{MISC}, v7, 4, v{MISC}"); a("v_lshrrev_b32 v7, 3, v5"); a(f"v_lshl_add_u32 v{MISC}, v7, 3, v{MISC}")
        a("v_and_b32 v7, 1, v5"); a(f"v_lshl_add_u32 v{MISC}, v7, 2, v{MISC}"); a(f"v_add_u32 v{MISC}, {HB}, v{MISC}")
    a("s_branch L_A_adrd")
    a("L_A_adr3:")
    a(f"s_lshl_b32 s34, s2, 12"); a(f"s_add_u32 s34, s34, {DOFF}"); a(f"v_add_u32 v{OGA}, s34, v30")
    if D16:
        a("s_lshr_b32 s34, s2, 3"); a("s_and_b32 s34, s34, 3"); a("s_lshl_b32 s34, s34, 10")
        a("s_lshr_b32 s35, s2, 5"); a("s_and_b32 s35, s35, 3"); a("s_lshl_b32 s35, s35, 8"); a("s_add_u32 s34, s34, s35")
        a("s_and_b32 s35, s2, 7"); a("s_lshl_b32 s35, s35, 5"); a("s_add_u32 s34, s34, s35")
    else:
        a("s_lshr_b32 s34, s2, 4"); a("s_and_b32 s34, s34, 3"); a("s_lshl_b32 s34, s34, 10")
        a("s_lshr_b32 s35, s2, 6"); a("s_lshl_b32 s35, s35, 8"); a("s_add_u32 s34, s34, s35")
        a("s_and_b32 s35, s2, 15"); a("s_lshl_b32 s35, s35, 4"); a("s_add_u32 s34, s34, s35")
    a(f"v_and_b32 v{ZGA}, 3, v1"); a(f"v_lshlrev_b32 v{ZGA}, 2, v{ZGA}"); a(f"v_add_u32 v{ZGA}, s34, v{ZGA}"); a(f"v_mov_b32 v{MISC}, 0")
    a("L_A_adrd:")
    if SPLIT:
        a(f"s_waitcnt vmcnt({SPLIT-1})")
        issue_wc()
    a("s_waitcnt vmcnt(6)")
    stamp(7)
    arrive(F_WG,20)
    wait_flag(F_WG,4,20,code=12)
    if LOCK==1:
        a(f"v_mov_b32 v22, {F_LOC}"); a("ds_read_b32 v23, v22")
    project(WG)
    if LOCK==1:
        a("v_readfirstlane_b32 s34, v23"); a("s_cmp_eq_u32 s34, 1"); a("s_cselect_b32 s67, 0x20000000, s67")
    if LOCK==2:
        a(f"s_cmp_eq_u32 s55, {sGD}"); a("s_cselect_b32 s67, s67, 0x20000000")
    if G16:
        a("s_nop 1"); a("v_mov_b32_dpp v22, v20 row_ror:8 row_mask:0xf bank_mask:0xf"); a("v_cvt_pk_bf16_f32 v20, v20, v22")
    a(f"buffer_store_dwordx2 v[20:21], v{GPUB}, s[36:39], s66 offen")
    if not opt.get("noG"): a(f"buffer_store_dwordx2 v[20:21], v{GPUB}, s[36:39], s67 offen sc1")
    WR=96
    OVL=opt.get("ovl",1); PRE=opt.get("pre",0)
    NST=1 if opt.get("noG") else 2
    def wc_arrive(nyoung):
        a(f"s_waitcnt vmcnt({NST+nyoung})")
        stamp(8)
        arrive(F_WC,22)
    def wc_ops():
        wait_flag(F_WC,4,22,code=13)
        for e in range(2):
            for ks in range(3):
                r=WR+(e*3+ks)*4
                a(f"ds_read_b64_tr_b16 v[{r}:{r+1}], v{TRC+e} offset:{ks*8192}"); a(f"ds_read_b64_tr_b16 v[{r+2}:{r+3}], v{TRC+e} offset:{ks*8192+4096}")
    def mid_n(n):
        def f():
            if PRE: wc_arrive(n)
            wc_ops()
        return f
    if not PRE: wc_arrive(0)
    if not OVL: wc_ops()
    a(f"s_cmp_eq_u32 {sW}, 2"); a("s_cbranch_scc1 L_A_h")
    a(f"s_cmp_eq_u32 {sW}, 3"); a("s_cbranch_scc1 L_A_w3")
    T0=76; Z0=92; U0=140
    poll("L_opoll",4,[("buffer_load_dwordx2",f"v[{Z0}:{Z0+1}]",f"v{ZGA}",0),("buffer_load_dwordx2",f"v[{Z0+2}:{Z0+3}]",f"v{ZGA}",32),
                      ("buffer_load_dwordx4",f"v[{T0}:{T0+3}]",f"v{OGA}",0),("buffer_load_dwordx4",f"v[{T0+4}:{T0+7}]",f"v{OGA}",64),
                      ("buffer_load_dwordx4",f"v[{T0+8}:{T0+11}]",f"v{OGA}",2048),("buffer_load_dwordx4",f"v[{T0+12}:{T0+15}]",f"v{OGA}",2112)],
         [T0+1+2*k for k in range(8)]+[Z0+1,Z0+3],24,mid=(mid_n(6) if OVL else None))
    stamp(9)
    R4="row_ror:4 row_mask:0xf bank_mask:0xf"; R8="row_ror:8 row_mask:0xf bank_mask:0xf"
    z0,z1=Z0,Z0+2
    a(f"v_max_f32 v24, v{z0}, v{z1}"); a("s_nop 1")
    a(f"v_max_f32_dpp v24, v24, v24 {R4}"); a("s_nop 1")
    a(f"v_max_f32_dpp v24, v24, v24 {R8}")
    a(f"v_sub_f32 v{z0}, v{z0}, v24"); a(f"v_sub_f32 v{z1}, v{z1}, v24")
    a(f"v_exp_f32 v{z0}, v{z0}"); a(f"v_exp_f32 v{z1}, v{z1}")
    for k in range(4):
        a(f"v_lshlrev_b32 v{U0+2*k}, 16, v{T0+2*k}"); a(f"v_and_b32 v{U0+1+2*k}, 0xffff0000, v{T0+2*k}")
    a(f"v_add_f32 v24, v{z0}, v{z1}")
    for k in range(2):
        a(f"v_lshlrev_b32 v{U0+8+2*k}, 16, v{T0+8+2*k}"); a(f"v_and_b32 v{U0+9+2*k}, 0xffff0000, v{T0+8+2*k}")
    a(f"v_add_f32_dpp v24, v24, v24 {R4}")
    for k in (2,3):
        a(f"v_lshlrev_b32 v{U0+8+2*k}, 16, v{T0+8+2*k}"); a(f"v_and_b32 v{U0+9+2*k}, 0xffff0000, v{T0+8+2*k}")
    a(f"v_add_f32_dpp v24, v24, v24 {R8}")
    a("v_rcp_f32 v24, v24"); a("s_nop 0")
    a(f"v_mul_f32 v{z0}, v{z0}, v24"); a(f"v_mul_f32 v{z1}, v{z1}, v24")
    for k in range(4): a(f"v_pk_mul_f32 v[{U0+2*k}:{U0+1+2*k}], v[{U0+2*k}:{U0+1+2*k}], v[{z0}:{z0+1}] op_sel_hi:[1,0]")
    for k in range(4): a(f"v_pk_fma_f32 v[{U0+2*k}:{U0+1+2*k}], v[{U0+8+2*k}:{U0+9+2*k}], v[{z1}:{z1+1}], v[{U0+2*k}:{U0+1+2*k}] op_sel_hi:[1,0,1]")
    for k in range(8): a(f"v_add_f32_dpp v{U0+k}, v{U0+k}, v{U0+k} {R4}")
    for k in range(8): a(f"v_add_f32_dpp v{U0+k}, v{U0+k}, v{U0+k} {R8}")
    for k in range(4): a(f"v_cvt_pk_bf16_f32 v{16+k}, v{U0+2*k}, v{U0+1+2*k}")
    a(f"ds_write_b128 v{MISC}, v[16:19]")
    arrive(F_O,22)
    a("s_branch L_A_c")
    a("L_A_h:")
    a("v_mov_b32 v16, 0")
    a("s_cmp_ge_u32 s57, 7"); a("s_cbranch_scc0 L_A_hg")
    if OVL: mid_n(0)()
    a("s_branch L_A_hw")
    a("L_A_hg:")
    G0=140
    if G16:
        poll("L_gpoll",3,[("buffer_load_dwordx2",f"v[{76+2*k}:{77+2*k}]",f"v{OGA}",512*k) for k in range(8)],[77+2*k for k in range(8)],24,mid=(mid_n(8) if OVL else None))
        for k in range(8):
            a(f"v_lshlrev_b32 v{G0+2*k}, 16, v{76+2*k}"); a(f"v_and_b32 v{G0+1+2*k}, 0xffff0000, v{76+2*k}")
        for m0_ in (0,8):
            a(f"v_pk_add_f32 v[{G0+m0_}:{G0+m0_+1}], v[{G0+m0_}:{G0+m0_+1}], v[{G0+m0_+2}:{G0+m0_+3}]")
            a(f"v_pk_add_f32 v[{G0+m0_+4}:{G0+m0_+5}], v[{G0+m0_+4}:{G0+m0_+5}], v[{G0+m0_+6}:{G0+m0_+7}]")
        for m0_ in (0,8):
            a(f"v_pk_add_f32 v[{G0+m0_}:{G0+m0_+1}], v[{G0+m0_}:{G0+m0_+1}], v[{G0+m0_+4}:{G0+m0_+5}]")
        GUP=((G0,G0+8,24),(G0+1,G0+9,25))
    else:
        poll("L_gpoll",3,[("buffer_load_dwordx4",f"v[{(G0 if k<4 else 76-16)+4*k}:{(G0 if k<4 else 76-16)+4*k+3}]",f"v{OGA}" if k<4 else f"v{ZGA}",1024*(k&3)) for k in range(8)],
             [G0+1+2*k for k in range(8)]+[76+1+2*k for k in range(8)],24,mid=(mid_n(8) if OVL else None))
        for b0 in (G0,76):
            for e in (0,2):
                a(f"v_add_f32 v{b0+e}, v{b0+e}, v{b0+e+4}"); a(f"v_add_f32 v{b0+e+8}, v{b0+e+8}, v{b0+e+12}")
            for e in (0,2): a(f"v_add_f32 v{b0+e}, v{b0+e}, v{b0+e+8}")
        GUP=((G0,76,24),(G0+2,78,25))
    k1=hx(f2u(0.044715)); k2=hx(f2u(-2.0*0.7978845608028654*1.4426950408889634))
    a(f"s_mov_b32 s34, {k1}"); a(f"s_mov_b32 s35, {k2}")
    GU=GUP
    for g_,u_,t in GU: a(f"v_mul_f32 v{t}, v{g_}, v{g_}")
    for g_,u_,t in GU: a(f"v_fma_f32 v{t}, v{t}, s34, 1.0")
    for g_,u_,t in GU: a(f"v_mul_f32 v{t}, v{t}, v{g_}")
    for g_,u_,t in GU: a(f"v_mul_f32 v{t}, s35, v{t}")
    for g_,u_,t in GU: a(f"v_exp_f32 v{t}, v{t}")
    a("s_nop 0")
    for g_,u_,t in GU: a(f"v_add_f32 v{t}, 1.0, v{t}")
    for g_,u_,t in GU: a(f"v_rcp_f32 v{t}, v{t}")
    a("s_nop 0")
    for g_,u_,t in GU: a(f"v_mul_f32 v{t}, v{t}, v{g_}")
    for g_,u_,t in GU: a(f"v_mul_f32 v{t}, v{t}, v{u_}")
    a("v_cvt_pk_bf16_f32 v16, v24, v25")
    a("L_A_hw:")
    if G16:
        a(f"ds_write_b16 v{MISC}, v16"); a(f"ds_write_b16_d16_hi v{MISC}, v16 offset:32")
    else: a(f"ds_write_b32 v{MISC}, v16")
    stamp(9)
    arrive(F_H if opt.get("hsep") else F_O,22)
    a("s_branch L_A_c")
    a("L_A_w3:")
    if OVL: mid_n(0)()
    a("s_load_dwordx2 s[4:5], s[0:1], 0"); a("s_load_dwordx2 s[8:9], s[0:1], 72"); a("s_waitcnt lgkmcnt(0)")
    a("s_and_b32 s5, s5, 0xffff"); a("s_mov_b32 s6, 4096"); a("s_mov_b32 s7, 0x20000")
    a("s_and_b32 s9, s9, 0xffff"); a("s_mov_b32 s10, 4096"); a("s_mov_b32 s11, 0x20000")
    a(f"buffer_load_dword v31, v{ZGA}, s[4:7], 0 offen")
    if D16: a(f"buffer_load_dword v30, v{ZGA}, s[4:7], 0 offen offset:16")
    a("L_A_c:")
    a(f"v_mov_b32 v21, {sTAG}"); a(f"v_mov_b32 v23, {sTAG}")
    AO=120
    if opt.get("hsep"):
        wait_flag(F_O,2,24,code=10)
        stamp(10)
        a(f"ds_read_b128 v[{AO}:{AO+3}], v{OBR}"); a(f"ds_read_b128 v[{AO+4}:{AO+7}], v{OBR} offset:64")
        a(f"v_mov_b32 v24, {F_H}"); a("ds_read_b32 v25, v24")
        a("s_waitcnt lgkmcnt(0)")
        for ks in (0,1):
            for e in range(2):
                r=WR+(e*3+ks)*4; D=132+4*e
                c="0" if ks==0 else f"v[{D}:{D+3}]"
                a(f"v_mfma_f32_16x16x32_bf16 v[{D}:{D+3}], v[{AO+4*ks}:{AO+3+4*ks}], v[{r}:{r+3}], {c}")
        a("v_readfirstlane_b32 s34, v25"); a("s_cmp_ge_u32 s34, 1"); a("s_cbranch_scc1 L_A_hok")
        wait_flag(F_H,1,24,code=10)
        a("L_A_hok:")
        a(f"ds_read_b128 v[{AO+8}:{AO+11}], v{HBR}"); a("s_waitcnt lgkmcnt(0)")
        for e in range(2):
            r=WR+(e*3+2)*4; D=132+4*e
            a(f"v_mfma_f32_16x16x32_bf16 v[{D}:{D+3}], v[{AO+8}:{AO+11}], v[{r}:{r+3}], v[{D}:{D+3}]")
    else:
        wait_flag(F_O,3,24,code=10)
        stamp(10)
        a(f"ds_read_b128 v[{AO}:{AO+3}], v{OBR}"); a(f"ds_read_b128 v[{AO+4}:{AO+7}], v{OBR} offset:64"); a(f"ds_read_b128 v[{AO+8}:{AO+11}], v{HBR}")
        a("s_waitcnt lgkmcnt(0)")
        for ks in (2,0,1):
            for e in range(2):
                r=WR+(e*3+ks)*4; D=132+4*e
                c="0" if ks==2 else f"v[{D}:{D+3}]"
                a(f"v_mfma_f32_16x16x32_bf16 v[{D}:{D+3}], v[{AO+4*ks}:{AO+3+4*ks}], v[{r}:{r+3}], {c}")
    a("s_nop 7")
    for e,dst in ((0,20),(1,22)):
        D=132+4*e
        a(f"v_cndmask_b32 v{dst}, v{D}, v{D+1}, s[40:41]"); a(f"v_cndmask_b32 v{dst}, v{dst}, v{D+2}, s[42:43]"); a(f"v_cndmask_b32 v{dst}, v{dst}, v{D+3}, s[44:45]")
    if D16:
        R8="row_ror:8 row_mask:0xf bank_mask:0xf"
        a("s_mov_b32 s46, 0x00ff00ff"); a("s_mov_b32 s47, 0x00ff00ff")
        a(f"v_mov_b32_dpp v24, v20 {R8}"); a(f"v_mov_b32_dpp v25, v22 {R8}")
        a("v_cndmask_b32 v26, v25, v20, s[46:47]"); a("v_cndmask_b32 v27, v22, v24, s[46:47]")
        a("v_cvt_pk_bf16_f32 v20, v26, v27")
        a(f"buffer_store_dwordx2 v[20:21], v{DPUB}, s[36:39], 0 offen sc1")
    else:
        a(f"buffer_store_dwordx2 v[20:21], v{DPUB}, s[36:39], 0 offen sc1")
        a(f"buffer_store_dwordx2 v[22:23], v{DPUB+1}, s[36:39], 0 offen sc1")
    stamp(11)
    a(f"s_cmp_eq_u32 {sW}, 3"); a("s_cbranch_scc0 L_A_done")
    if D16: a("s_cmp_lt_u32 s2, 128"); a("s_cbranch_scc0 L_A_fin")
    if opt.get("ddelay",10)>0: a(f"s_sleep {opt.get('ddelay',10)}")
    poll("L_dpoll",5,[("buffer_load_dwordx4",f"v[{76+4*k}:{79+4*k}]",f"v{OGA}",1024*k) for k in range(4)],[77+2*k for k in range(8)],24,local=False,slp=opt.get("dslp",0))
    if D16:
        for k in range(8):
            r=76+2*k; u=96+2*k
            a(f"v_lshlrev_b32 v{u}, 16, v{r}"); a(f"v_and_b32 v{u+1}, 0xffff0000, v{r}")
        for k in (2,4,6):
            a(f"v_pk_add_f32 v[96:97], v[96:97], v[{96+2*k}:{97+2*k}]"); a(f"v_pk_add_f32 v[98:99], v[98:99], v[{98+2*k}:{99+2*k}]")
        a("s_nop 0")
        for ror in (4,8):
            for r in (96,97,98,99): a(f"v_add_f32_dpp v{r}, v{r}, v{r} row_ror:{ror} row_mask:0xf bank_mask:0xf")
        for sw in ("v_permlane16_swap_b32","v_permlane32_swap_b32"):
            for k in range(4): a(f"v_mov_b32 v{100+k}, v{96+k}")
            for k in range(4): a(f"{sw} v{96+k}, v{100+k}")
            for k in range(4): a(f"v_add_f32 v{96+k}, v{96+k}, v{100+k}")
        a("v_lshlrev_b32 v20, 16, v31"); a("v_and_b32 v21, 0xffff0000, v31"); a("v_lshlrev_b32 v22, 16, v30"); a("v_and_b32 v23, 0xffff0000, v30")
        a("v_add_f32 v96, v96, v20"); a("v_add_f32 v98, v98, v21"); a("v_add_f32 v97, v97, v22"); a("v_add_f32 v99, v99, v23")
        a("v_cvt_pk_bf16_f32 v16, v96, v98"); a("v_cvt_pk_bf16_f32 v17, v97, v99")
        a("s_mov_b64 exec, 15")
        a(f"buffer_store_dword v16, v{ZGA}, s[8:11], 0 offen"); a(f"buffer_store_dword v17, v{ZGA}, s[8:11], 0 offen offset:16")
    else:
        a("v_add_f32 v76, v76, v80"); a("v_add_f32 v78, v78, v82"); a("v_add_f32 v84, v84, v88"); a("v_add_f32 v86, v86, v90")
        a("v_add_f32 v16, v76, v84"); a("v_add_f32 v18, v78, v86")
        a("s_nop 0")
        for ror in (4,8):
            a(f"v_add_f32_dpp v16, v16, v16 row_ror:{ror} row_mask:0xf bank_mask:0xf")
            a(f"v_add_f32_dpp v18, v18, v18 row_ror:{ror} row_mask:0xf bank_mask:0xf")
            a("s_nop 0")
        for sw in ("v_permlane16_swap_b32","v_permlane32_swap_b32"):
            a("v_mov_b32 v20, v16"); a("v_mov_b32 v21, v18"); a("s_nop 0")
            a(f"{sw} v16, v20"); a(f"{sw} v18, v21")
            a("v_add_f32 v16, v16, v20"); a("v_add_f32 v18, v18, v21")
        a("v_lshlrev_b32 v20, 16, v31"); a("v_and_b32 v21, 0xffff0000, v31")
        a("v_add_f32 v16, v16, v20"); a("v_add_f32 v18, v18, v21")
        a("v_cvt_pk_bf16_f32 v16, v16, v18")
        a("s_mov_b64 exec, 15")
        a(f"buffer_store_dword v16, v{ZGA}, s[8:11], 0 offen")
    a("s_cmp_eq_u32 s2, 0"); a("s_cbranch_scc0 L_A_fin")
    a("s_mov_b64 exec, 1")
    a(f"v_mov_b32 v16, {sTAG}"); a("v_mov_b32 v17, 0")
    a(f"buffer_store_dword v16, v17, s[36:39], 0 offen {'sc1' if opt.get('epsc1') else ''}")
    a("L_A_fin:")
    if opt.get("lite"):
        if opt.get("loc")==2: a("v_readlane_b32 s98, v165, 0")
        a("s_memrealtime s[96:97]"); a("s_waitcnt lgkmcnt(0)")
        a("s_mov_b64 exec, 1"); a("s_lshl_b32 s34, s2, 3"); a(f"s_add_u32 s34, s34, {STOFF}")
        a("v_mov_b32 v2, s34"); a("v_mov_b32 v4, s98"); a("v_mov_b32 v5, s96")
        a("buffer_store_dwordx2 v[4:5], v2, s[36:39], 0 offen")
    if opt.get("dbgtime"):
        a("s_memrealtime s[96:97]"); a("s_waitcnt lgkmcnt(0)")
        a("s_mov_b64 exec, 1")
        a("s_mov_b32 s40, s24"); a("s_and_b32 s41, s25, 0xffff"); a("s_mov_b32 s42, 256"); a("s_mov_b32 s43, 0x20000")
        a("s_not_b32 s98, s98"); a("v_mov_b32 v2, s98"); a("v_mov_b32 v3, s96"); a("v_mov_b32 v4, 0")
        a("buffer_atomic_umax v2, v4, s[40:43], 0 offen"); a("buffer_atomic_umax v3, v4, s[40:43], 0 offen offset:4")
    a("L_A_done:")
    stamp(12)
    dump_stamps(13)
    a("s_endpgm")
    for c in sorted(fails):
        a(f"L_fail{c}:")
        a("s_mov_b64 exec, 1")
        a("s_mov_b32 s40, s24"); a("s_and_b32 s41, s25, 0xffff"); a("s_mov_b32 s42, 256"); a("s_mov_b32 s43, 0x20000")
        a(f"v_mov_b32 v2, {4*c}"); a("v_mov_b32 v3, s2"); a("v_add_u32 v3, 0x10000, v3")
        a("buffer_store_dword v3, v2, s[40:43], 0 offen")
        a("s_endpgm")
    a("L_end:")
    a("s_endpgm")
    a(kd(KN, opt.get("vgpr",168), 102))
    return a.text()

if __name__=="__main__":
    opt={}
    out="v5"
    for arg in sys.argv[1:]:
        k,v=arg.split("=",1)
        if k=="out": out=v
        else:
            try: opt[k]=int(v)
            except: opt[k]=v
    t=gen(opt)
    hz=[p for p in lint.lint(t) if not (p[2]=="outstanding-lgkm" and "s_memrealtime" in p[5] and "s_memrealtime" in p[6])]
    for p in hz[:12]: print("HAZARD",p)
    build(t,out,KN)
    print("built",out, len(t),"LDS",LDSZ)
```
